```python
import torch

def _softmax(x, axis=-1):
    return torch.softmax(x, dim=axis)
def _gelu(x):
    return torch.nn.functional.gelu(x, approximate="tanh")
def _silu(x):
    return torch.nn.functional.silu(x)
def _sigmoid(x):
    return torch.sigmoid(x)
def _layernorm(x, axis=-1, eps=1e-5):
    m = x.mean(dim=axis, keepdim=True)
    v = x.var(dim=axis, keepdim=True, unbiased=False)
    return (x - m) / torch.sqrt(v + eps)
def _scatter_add(tgt, idx, src, axis=0):
    return tgt.clone().index_add_(axis, idx, src)
def _segment_sum(src, seg, n):
    out = torch.zeros((n,) + src.shape[1:], dtype=src.dtype)
    return out.index_add_(0, seg, src)
def _pad(x, pw):
    flat = tuple(v for pair in reversed(pw) for v in pair)
    return torch.nn.functional.pad(x, flat)

kernel_name = 'standalone__fused_io_aware_attn__prompt'

def setup_inputs():

    _w = (lambda a: (lambda t: t.to(torch.bfloat16) if t.is_floating_point() else t)(torch.as_tensor(a)))
    B, H, S = 2, 32, 2048
    Dh = max(1, 1024 // 32)
    return {
        "q": _w((lambda *s: torch.randn(*s, dtype=torch.bfloat16) * 0.8)(B, H, S, Dh)),
        "k": _w((lambda *s: torch.randn(*s, dtype=torch.bfloat16) * 0.8)(B, H, S, Dh)),
        "v": _w((lambda *s: torch.randn(*s, dtype=torch.bfloat16) * 0.05)(B, H, S, Dh)),
    }

def reference(q, k, v):
    scale = q.shape[-1] ** -0.5
    s = torch.einsum('bhqd,bhkd->bhqk', q, k) * scale
    p = _softmax(s, axis=-1)
    return torch.einsum('bhqk,bhkd->bhqd', p, v)
```

```python
import sys, struct

NAME = "standalone__fused_io_aware_attn__prompt"
def f32bits(x): return struct.unpack("<I", struct.pack("<f", x))[0]

class Gen:
    def __init__(s): s.L = []
    def __call__(s, txt): s.L.append("    " + txt)
    def label(s, l): s.L.append(l + ":")
    def c(s, t): s.L.append("    ; " + t)
    def text(s): return "\n".join(s.L)

def gen(NS=8, PRIO=False):
    g = Gen()
    CH = 16384
    NCH = 16
    LDS = NS * CH
    S = [64 + 16 * i for i in range(4)]
    CB = [128, 144]
    O = [160, 176]
    Lr = [192, 196]
    Q = [[200, 204], [208, 212]]
    K = [[216, 220], [224, 228]]
    V = [[232, 236], [240, 244]]
    ONES = 248
    IDX = 252
    KA0, KA1, VA = 253, 254, 255
    vLane, vDK, vDV, vQoff = 1, 2, 3, 4
    T = 8
    def r(b, n): return f"v[{b}:{b+n-1}]"
    sK, sV, sQ, sO = 12, 16, 20, 24
    sWave, sHead, sQB = 28, 29, 30
    sGoff, sM0, sIt, sTmp, sC = 31, 32, 33, 34, 35
    sTmp2 = 36
    g("s_cmp_ge_u32 s2, 256")
    g("s_cbranch_scc1 L_end")
    g("s_load_dwordx4 s[4:7], s[0:1], 0")
    g("s_load_dwordx4 s[8:11], s[0:1], 16")
    g(f"v_lshrrev_b32 v{T}, 6, v0")
    g(f"v_and_b32 v{vLane}, 63, v0")
    g(f"v_readfirstlane_b32 s{sWave}, v{T}")
    g(f"s_and_b32 s{sTmp}, s2, 7")
    g(f"s_lshr_b32 s{sTmp2}, s2, 3")
    g(f"s_lshl_b32 s{sHead}, s{sTmp}, 3")
    g(f"s_lshr_b32 s{sTmp}, s{sTmp2}, 2")
    g(f"s_add_u32 s{sHead}, s{sHead}, s{sTmp}")
    g(f"s_and_b32 s{sQB}, s{sTmp2}, 3")
    g(f"v_lshlrev_b32 v{vDV}, 4, v{vLane}")
    g(f"v_lshrrev_b32 v{T}, 4, v{vLane}")
    g(f"v_lshlrev_b32 v{T}, 4, v{T}")
    g(f"v_xor_b32 v{vDK}, v{vDV}, v{T}")
    g(f"s_lshl_b32 s{sTmp}, s{sHead}, 17")
    g(f"s_lshl_b32 s{sGoff}, s{sWave}, 10")
    g(f"s_mov_b32 s{sM0}, s{sGoff}")
    g("s_waitcnt lgkmcnt(0)")
    g(f"s_add_u32 s{sK}, s6, s{sTmp}")
    g(f"s_addc_u32 s{sK+1}, s7, 0")
    g(f"s_mov_b32 s{sK+2}, 131072")
    g(f"s_mov_b32 s{sK+3}, 0x00020000")
    g(f"s_add_u32 s{sV}, s8, s{sTmp}")
    g(f"s_addc_u32 s{sV+1}, s9, 0")
    g(f"s_mov_b32 s{sV+2}, 131072")
    g(f"s_mov_b32 s{sV+3}, 0x00020000")
    def dma_chunk():
        g(f"s_mov_b32 m0, s{sM0}")
        g(f"s_add_u32 s{sTmp2}, s{sM0}, 8192")
        g(f"buffer_load_dwordx4 v{vDK}, s[{sK}:{sK+3}], s{sGoff} offen lds")
        g(f"s_mov_b32 m0, s{sTmp2}")
        g(f"s_add_u32 s{sM0}, s{sM0}, {CH}")
        g(f"buffer_load_dwordx4 v{vDV}, s[{sV}:{sV+3}], s{sGoff} offen lds")
        g(f"s_add_u32 s{sGoff}, s{sGoff}, 8192")
        g(f"s_and_b32 s{sM0}, s{sM0}, {LDS-1}")
    dma_chunk()
    g(f"s_lshl_b32 s{sTmp2}, s{sQB}, 15")
    g(f"s_add_u32 s{sTmp}, s{sTmp}, s{sTmp2}")
    g(f"s_lshl_b32 s{sTmp2}, s{sWave}, 12")
    g(f"s_add_u32 s{sTmp}, s{sTmp}, s{sTmp2}")
    g(f"s_add_u32 s{sQ}, s4, s{sTmp}")
    g(f"s_addc_u32 s{sQ+1}, s5, 0")
    g(f"s_mov_b32 s{sQ+2}, 4096")
    g(f"s_mov_b32 s{sQ+3}, 0x00020000")
    g(f"s_add_u32 s{sO}, s10, s{sTmp}")
    g(f"s_addc_u32 s{sO+1}, s11, 0")
    g(f"s_mov_b32 s{sO+2}, 4096")
    g(f"s_mov_b32 s{sO+3}, 0x00020000")
    g(f"v_and_b32 v{T}, 31, v{vLane}")
    g(f"v_lshrrev_b32 v{T+1}, 5, v{vLane}")
    g(f"v_lshlrev_b32 v{vQoff}, 6, v{T}")
    g(f"v_lshl_add_u32 v{vQoff}, v{T+1}, 4, v{vQoff}")
    QR = 16
    for j in range(2):
        for h in range(2):
            g(f"buffer_load_dwordx4 {r(QR + 8*j + 4*h, 4)}, v{vQoff}, s[{sQ}:{sQ+3}], 0 offen offset:{j*2048 + h*32}")
    for c in range(1, NS - 1):
        dma_chunk()
    g(f"v_lshrrev_b32 v{T+2}, 2, v{T}")
    g(f"v_and_b32 v{T+2}, 3, v{T+2}")
    g(f"v_xor_b32 v{T+2}, v{T+2}, v{T+1}")
    g(f"v_lshlrev_b32 v{T+2}, 4, v{T+2}")
    g(f"v_lshl_add_u32 v{KA0}, v{T}, 6, v{T+2}")
    g(f"v_xor_b32 v{KA1}, 32, v{KA0}")
    g(f"v_and_b32 v{T+2}, 15, v{vLane}")
    g(f"v_lshrrev_b32 v{T+2}, 2, v{T+2}")
    g(f"v_lshl_add_u32 v{T+2}, v{T+1}, 3, v{T+2}")
    g(f"v_lshlrev_b32 v{T+2}, 6, v{T+2}")
    g(f"v_lshrrev_b32 v{T+3}, 4, v{vLane}")
    g(f"v_and_b32 v{T+3}, 1, v{T+3}")
    g(f"v_lshl_add_u32 v{T+2}, v{T+3}, 5, v{T+2}")
    g(f"v_and_b32 v{T+3}, 3, v{vLane}")
    g(f"v_lshl_add_u32 v{T+2}, v{T+3}, 3, v{T+2}")
    g(f"v_add_u32 v{VA}, 8192, v{T+2}")
    g(f"v_lshrrev_b32 v{T+2}, 2, v{vLane}")
    g(f"v_and_b32 v{T+2}, 1, v{T+2}")
    g(f"v_cmp_eq_u32 vcc, 0, v{T+2}")
    g(f"v_mov_b32 v{T+3}, 0x3f803f80")
    g(f"v_mov_b32 v{IDX}, 0xdddd")
    g(f"v_cndmask_b32 v{ONES}, 0, v{T+3}, vcc")
    g(f"v_cndmask_b32 v{ONES+1}, 0, v{T+3}, vcc")
    g(f"v_cndmask_b32 v{ONES+2}, v{T+3}, 0, vcc")
    g(f"v_cndmask_b32 v{ONES+3}, v{T+3}, 0, vcc")
    for j in range(2):
        for i in range(16): g(f"v_mov_b32 v{O[j]+i}, 0")
        for i in range(4): g(f"v_mov_b32 v{Lr[j]+i}, 0")
    for i in range(8, 16): g(f"v_mov_b32 v{S[3]+i}, 0")
    for i in range(4): g(f"v_mov_b32 v{V[1][1]+i}, 0")
    g(f"s_mov_b32 s{sC}, 0x{f32bits(1.4426950408889634 * 32 ** -0.5):08x}")
    g(f"s_waitcnt vmcnt({2*(NS-2)})")
    for j in range(2):
        for h in range(2):
            for i in range(4):
                src = QR + 8*j + 4*h + i
                g(f"v_lshlrev_b32 v{T}, 16, v{src}")
                g(f"v_and_b32 v{T+1}, 0xffff0000, v{src}")
                g(f"v_mul_f32 v{T}, s{sC}, v{T}")
                g(f"v_mul_f32 v{T+1}, s{sC}, v{T+1}")
                g(f"v_cvt_pk_bf16_f32 v{Q[j][h]+i}, v{T}, v{T+1}")
    g("s_barrier")
    def kread(buf, kt):
        g(f"ds_read_b128 {r(K[buf][0],4)}, v{KA0} offset:{kt*2048}")
        g(f"ds_read_b128 {r(K[buf][1],4)}, v{KA1} offset:{kt*2048}")
    def vread(buf, kt):
        g(f"ds_read_b64_tr_b16 {r(V[buf][0],2)}, v{VA} offset:{kt*2048}")
        g(f"ds_read_b64_tr_b16 {r(V[buf][0]+2,2)}, v{VA} offset:{kt*2048+256}")
        g(f"ds_read_b64_tr_b16 {r(V[buf][1],2)}, v{VA} offset:{kt*2048+1024}")
        g(f"ds_read_b64_tr_b16 {r(V[buf][1]+2,2)}, v{VA} offset:{kt*2048+1280}")
    kread(0, 0); vread(0, 0); kread(1, 1)
    g("s_waitcnt lgkmcnt(6)")
    def qk(dst, kbuf, j, cin):
        g(f"v_mfma_f32_32x32x16_bf16 {r(dst,16)}, {r(K[kbuf][0],4)}, {r(Q[j][0],4)}, {cin}")
        g(f"v_mfma_f32_32x32x16_bf16 {r(dst,16)}, {r(K[kbuf][1],4)}, {r(Q[j][1],4)}, {r(dst,16)}")
    qk(S[0], 0, 0, "0"); qk(S[1], 0, 1, "0")
    g("s_nop 15")
    def rowmax_to_C(sbuf, j, first=True):
        m = T + 4 * j
        g(f"v_max3_f32 v{m}, v{sbuf}, v{sbuf+1}, v{sbuf+2}")
        for i in range(3, 15, 2):
            g(f"v_max3_f32 v{m}, v{m}, v{sbuf+i}, v{sbuf+i+1}")
        g(f"v_max_f32 v{m}, v{m}, v{sbuf+15}")
        g(f"v_mov_b32 v{m+1}, v{m}")
        g("s_nop 1")
        g(f"v_permlane32_swap_b32 v{m}, v{m+1}")
        g("s_nop 1")
        g(f"v_max_f32 v{m}, v{m}, v{m+1}")
        g(f"v_sub_f32 v{m}, 0, v{m}")
        for i in range(16): g(f"v_mov_b32 v{CB[j]+i}, v{m}")
    rowmax_to_C(S[0], 0); rowmax_to_C(S[1], 1)
    g("s_nop 1")
    qk(S[0], 0, 0, r(CB[0], 16))
    g(f"s_mov_b32 s{sIt}, 0")
    g("s_nop 7")
    g("s_nop 1")
    g.L.append(".p2align 6")
    g.label("L_loop")
    def pv(j, vb, half, sbuf):
        g(f"v_smfmac_f32_32x32x32_bf16 {r(O[j],16)}, {r(V[vb][half],4)}, {r(sbuf + 8*half, 8)}, v{IDX}")
    def ls(j, half, sbuf):
        g(f"v_smfmac_f32_16x16x64_bf16 {r(Lr[j],4)}, {r(ONES,4)}, {r(sbuf + 8*half, 8)}, v{IDX}")
    for n in range(8):
        kt, j = n // 2, n % 2
        sb = S[n % 4]; sprev = S[(n - 1) % 4]; snext = S[(n + 1) % 4]
        ktn, jn = ((n + 1) // 2), (n + 1) % 2
        ktp, jp = ((n - 1) // 2), (n - 1) % 2
        e = iter(range(16))
        def ex(k):
            for _ in range(k):
                i = next(e); g(f"v_exp_f32 v{sb+i}, v{sb+i}")
        g.c(f"---- step {n}: kt={kt} j={j}")
        if n == 5:
            g(f"s_cmp_lt_u32 s{sIt}, {NCH - (NS - 1)}")
            g("s_cbranch_scc0 L_tail_wait")
            g(f"s_waitcnt vmcnt({2*(NS-3)})")
            g("s_barrier")
            dma_chunk()
            g("s_branch L_wait_done")
            g.label("L_tail_wait")
            g("s_waitcnt vmcnt(0)")
            g("s_barrier")
            g.label("L_wait_done")
            g(f"v_add_u32 v{KA0}, {CH}, v{KA0}")
            g(f"v_add_u32 v{KA1}, {CH}, v{KA1}")
            g(f"v_and_b32 v{KA0}, {LDS-1}, v{KA0}")
            g(f"v_and_b32 v{KA1}, {LDS-1}, v{KA1}")
        if n % 2 == 1:
            g("s_waitcnt lgkmcnt(4)")
        g(f"v_mfma_f32_32x32x16_bf16 {r(snext,16)}, {r(K[ktn%2][0],4)}, {r(Q[jn][0],4)}, {r(CB[jn],16)}")
        ex(3)
        g(f"v_mfma_f32_32x32x16_bf16 {r(snext,16)}, {r(K[ktn%2][1],4)}, {r(Q[jn][1],4)}, {r(snext,16)}")
        if n % 2 == 1:
            kread(kt % 2, (kt + 2) % 4)
        ex(3)
        pv(jp, ktp % 2, 1, sprev)
        if n == 6:
            g(f"v_add_u32 v{VA}, {CH}, v{VA}")
            g(f"v_and_b32 v{VA}, {LDS-1}, v{VA}")
        if n % 2 == 0:
            vread((kt + 1) % 2, (kt + 1) % 4)
        ex(3)
        ls(jp, 1, sprev)
        ex(2)
        if n % 2 == 0:
            g("s_waitcnt lgkmcnt(6)")
        pv(j, kt % 2, 0, sb)
        ex(3)
        ls(j, 0, sb)
        ex(2)
    g(f"s_add_u32 s{sIt}, s{sIt}, 1")
    g(f"s_cmp_lt_u32 s{sIt}, {NCH}")
    g("s_cbranch_scc1 L_loop")
    g("s_nop 1")
    pv(1, 1, 1, S[3]); ls(1, 1, S[3])
    g("s_waitcnt lgkmcnt(0)")
    g("s_nop 15")
    g("s_nop 3")
    g.label("L_check")
    g(f"v_mul_f32 v{T}, 0, v{Lr[0]}")
    g(f"v_fma_f32 v{T}, v{Lr[1]}, 0, v{T}")
    for j in range(2):
        for i in range(16): g(f"v_fma_f32 v{T}, v{O[j]+i}, 0, v{T}")
    g(f"v_cmp_u_f32 vcc, v{T}, v{T}")
    g("s_nop 1")
    g("s_cmp_lg_u64 vcc, 0")
    g("s_cbranch_scc1 L_fallback")
    g.label("L_final")
    for j in range(2):
        g(f"v_rcp_f32 v{T}, v{Lr[j]}")
        g("s_nop 0")
        for i in range(16): g(f"v_mul_f32 v{O[j]+i}, v{O[j]+i}, v{T}")
        P = 16 + 8 * j
        for gq in range(4):
            g(f"v_cvt_pk_bf16_f32 v{P+2*gq}, v{O[j]+4*gq}, v{O[j]+4*gq+1}")
            g(f"v_cvt_pk_bf16_f32 v{P+2*gq+1}, v{O[j]+4*gq+2}, v{O[j]+4*gq+3}")
        g("s_nop 1")
        for pr in range(2):
            b = P + 4 * pr
            g(f"v_permlane32_swap_b32 v{b}, v{b+2}")
            g(f"v_permlane32_swap_b32 v{b+1}, v{b+3}")
        g("s_nop 1")
        for pr in range(2):
            g(f"buffer_store_dwordx4 {r(P+4*pr,4)}, v{vQoff}, s[{sO}:{sO+3}], 0 offen offset:{j*2048 + pr*32}")
    g("s_endpgm")
    g.label("L_fallback")
    FB = CH + 0
    M0r, M1r = T + 0, T + 4
    g("s_waitcnt vmcnt(0) lgkmcnt(0)")
    g(f"v_mov_b32 v{M0r}, 0xff800000")
    g(f"v_mov_b32 v{M1r}, 0xff800000")
    g(f"s_mov_b32 s{sGoff}, 0")
    g.label("L_fb_max")
    g(f"buffer_load_dwordx4 {r(K[0][0],4)}, v{vQoff}, s[{sK}:{sK+3}], s{sGoff} offen")
    g(f"buffer_load_dwordx4 {r(K[0][1],4)}, v{vQoff}, s[{sK}:{sK+3}], s{sGoff} offen offset:32")
    g("s_waitcnt vmcnt(0)")
    qk(S[0], 0, 0, "0"); qk(S[1], 0, 1, "0")
    g("s_nop 15")
    for j, m in ((0, M0r), (1, M1r)):
        for i in range(0, 16, 2):
            g(f"v_max3_f32 v{m}, v{m}, v{S[j]+i}, v{S[j]+i+1}")
    g(f"s_add_u32 s{sGoff}, s{sGoff}, 2048")
    g(f"s_cmp_lt_u32 s{sGoff}, 131072")
    g("s_cbranch_scc1 L_fb_max")
    for j, m in ((0, M0r), (1, M1r)):
        g(f"v_mov_b32 v{m+1}, v{m}")
        g("s_nop 1")
        g(f"v_permlane32_swap_b32 v{m}, v{m+1}")
        g("s_nop 1")
        g(f"v_max_f32 v{m}, v{m}, v{m+1}")
        g(f"v_sub_f32 v{m}, 0, v{m}")
        for i in range(16): g(f"v_mov_b32 v{CB[j]+i}, v{m}")
        for i in range(16): g(f"v_mov_b32 v{O[j]+i}, 0")
        for i in range(4): g(f"v_mov_b32 v{Lr[j]+i}, 0")
    g(f"s_lshl_b32 s{sTmp}, s{sWave}, 12")
    g(f"s_add_u32 s{sTmp}, s{sTmp}, {FB}")
    g(f"v_and_b32 v{VA}, 1023, v{VA}")
    g(f"v_add_u32 v{VA}, s{sTmp}, v{VA}")
    g(f"s_add_u32 s{sTmp2}, s{sTmp}, 1024")
    g(f"s_mov_b32 s{sGoff}, 0")
    g.label("L_fb_loop")
    g(f"buffer_load_dwordx4 {r(K[0][0],4)}, v{vQoff}, s[{sK}:{sK+3}], s{sGoff} offen")
    g(f"buffer_load_dwordx4 {r(K[0][1],4)}, v{vQoff}, s[{sK}:{sK+3}], s{sGoff} offen offset:32")
    g(f"s_mov_b32 m0, s{sTmp}")
    g("s_nop 0")
    g(f"buffer_load_dwordx4 v{vDV}, s[{sV}:{sV+3}], s{sGoff} offen lds")
    g(f"buffer_load_dwordx4 v{vDV}, s[{sV}:{sV+3}], s{sGoff} offen offset:1024 lds")
    g("s_waitcnt vmcnt(0)")
    vread(0, 0)
    qk(S[0], 0, 0, r(CB[0], 16)); qk(S[1], 0, 1, r(CB[1], 16))
    g("s_nop 15")
    for j in range(2):
        for i in range(16): g(f"v_exp_f32 v{S[j]+i}, v{S[j]+i}")
    g("s_waitcnt lgkmcnt(0)")
    g("s_nop 1")
    for j in range(2):
        pv(j, 0, 0, S[j]); pv(j, 0, 1, S[j]); ls(j, 0, S[j]); ls(j, 1, S[j])
    g(f"s_add_u32 s{sGoff}, s{sGoff}, 2048")
    g(f"s_cmp_lt_u32 s{sGoff}, 131072")
    g("s_cbranch_scc1 L_fb_loop")
    g("s_nop 15")
    g("s_nop 3")
    g("s_branch L_final")
    g.label("L_end")
    g("s_endpgm")
    hdr = open("cdna_kernels/" + NAME + ".s.ref").read().split("; Override launch")[0]
    out = hdr + f"""; Override launch geometry by editing the next line (default: block=256,
; grid=ceil(out_elems/256), lds=0). Harness parses it; keep it on one line.
; @launch grid=(256,1,1) block=(512,1,1) lds={LDS}
.amdgcn_target "amdgcn-amd-amdhsa--gfx950"
.text
.globl {NAME}_kernel
.p2align 8
.type {NAME}_kernel,@function
{NAME}_kernel:
{g.text()}
.section .rodata,"a"
.p2align 6
.amdhsa_kernel {NAME}_kernel
  .amdhsa_next_free_vgpr 256
  .amdhsa_next_free_sgpr 48
  .amdhsa_accum_offset 256
  .amdhsa_group_segment_fixed_size 0
  .amdhsa_kernarg_size 48
  .amdhsa_user_sgpr_count 2
  .amdhsa_user_sgpr_kernarg_segment_ptr 1
  .amdhsa_system_sgpr_workgroup_id_x 1
.end_amdhsa_kernel
"""
    return out

if __name__ == "__main__":
    out = sys.argv[1] if len(sys.argv) > 1 else f"cdna_kernels/{NAME}.s"
    open(out, "w").write(gen())
```

```python
import sys, struct

NAME = "standalone__fused_io_aware_attn__prompt"
def f32bits(x): return struct.unpack("<I", struct.pack("<f", x))[0]

class Gen:
    def __init__(s): s.L = []
    def __call__(s, txt): s.L.append("    " + txt)
    def label(s, l): s.L.append(l + ":")
    def c(s, t): s.L.append("    ; " + t)
    def text(s): return "\n".join(s.L)

def gen(NS=8, PRIO=0, INSTR=False, NOBAR=0, NODS=0, NOWAIT=0):
    g = Gen()
    CH = 16384
    NCH = 16
    LDS = NS * CH
    S = [64 + 16 * i for i in range(4)]
    CB = [128, 144]
    O = [160, 176]
    Lr = [192, 196]
    Q = [[200, 204], [208, 212]]
    K = [[216, 220], [224, 228]]
    V = [[232, 236], [240, 244]]
    ONES = 248
    IDX = 252
    KA0, KA1, VA = 253, 254, 255
    vLane, vDK, vDV, vQoff = 1, 2, 3, 4
    T = 8
    def r(b, n): return f"v[{b}:{b+n-1}]"
    sK, sV, sQ, sO = 12, 16, 20, 24
    sWave, sHead, sQB = 28, 29, 30
    sGoff, sM0, sIt, sTmp, sC = 31, 32, 33, 34, 35
    sTmp2 = 36
    g("s_cmp_ge_u32 s2, 256")
    g("s_cbranch_scc1 L_end")
    if INSTR:
        g("s_memtime s[40:41]")
        g("s_memrealtime s[48:49]")
        g("s_load_dwordx2 s[52:53], s[0:1], 40")
    g("s_load_dwordx4 s[4:7], s[0:1], 0")
    g("s_load_dwordx4 s[8:11], s[0:1], 16")
    g(f"v_lshrrev_b32 v{T}, 6, v0")
    g(f"v_and_b32 v{vLane}, 63, v0")
    g(f"v_readfirstlane_b32 s{sWave}, v{T}")
    g(f"s_and_b32 s{sTmp}, s2, 7")
    g(f"s_lshr_b32 s{sTmp2}, s2, 3")
    g(f"s_lshl_b32 s{sHead}, s{sTmp}, 3")
    g(f"s_lshr_b32 s{sTmp}, s{sTmp2}, 2")
    g(f"s_add_u32 s{sHead}, s{sHead}, s{sTmp}")
    g(f"s_and_b32 s{sQB}, s{sTmp2}, 3")
    g(f"v_lshlrev_b32 v{vDV}, 4, v{vLane}")
    g(f"v_lshrrev_b32 v{T}, 4, v{vLane}")
    g(f"v_lshlrev_b32 v{T}, 4, v{T}")
    g(f"v_xor_b32 v{vDK}, v{vDV}, v{T}")
    g(f"s_lshl_b32 s{sTmp}, s{sHead}, 17")
    g(f"s_lshl_b32 s{sGoff}, s{sWave}, 10")
    g(f"s_mov_b32 s{sM0}, s{sGoff}")
    g("s_waitcnt lgkmcnt(0)")
    if INSTR: g("s_memtime s[62:63]")
    g(f"s_add_u32 s{sK}, s6, s{sTmp}")
    g(f"s_addc_u32 s{sK+1}, s7, 0")
    g(f"s_mov_b32 s{sK+2}, 131072")
    g(f"s_mov_b32 s{sK+3}, 0x00020000")
    g(f"s_add_u32 s{sV}, s8, s{sTmp}")
    g(f"s_addc_u32 s{sV+1}, s9, 0")
    g(f"s_mov_b32 s{sV+2}, 131072")
    g(f"s_mov_b32 s{sV+3}, 0x00020000")
    def dma_chunk():
        g(f"s_mov_b32 m0, s{sM0}")
        g(f"s_add_u32 s{sTmp2}, s{sM0}, 8192")
        g(f"buffer_load_dwordx4 v{vDK}, s[{sK}:{sK+3}], s{sGoff} offen lds")
        g(f"s_mov_b32 m0, s{sTmp2}")
        g(f"s_add_u32 s{sM0}, s{sM0}, {CH}")
        g(f"buffer_load_dwordx4 v{vDV}, s[{sV}:{sV+3}], s{sGoff} offen lds")
        g(f"s_add_u32 s{sGoff}, s{sGoff}, 8192")
        g(f"s_and_b32 s{sM0}, s{sM0}, {LDS-1}")
    dma_chunk()
    g(f"s_lshl_b32 s{sTmp2}, s{sQB}, 15")
    g(f"s_add_u32 s{sTmp}, s{sTmp}, s{sTmp2}")
    g(f"s_lshl_b32 s{sTmp2}, s{sWave}, 12")
    g(f"s_add_u32 s{sTmp}, s{sTmp}, s{sTmp2}")
    g(f"s_add_u32 s{sQ}, s4, s{sTmp}")
    g(f"s_addc_u32 s{sQ+1}, s5, 0")
    g(f"s_mov_b32 s{sQ+2}, 4096")
    g(f"s_mov_b32 s{sQ+3}, 0x00020000")
    g(f"s_add_u32 s{sO}, s10, s{sTmp}")
    g(f"s_addc_u32 s{sO+1}, s11, 0")
    g(f"s_mov_b32 s{sO+2}, 4096")
    g(f"s_mov_b32 s{sO+3}, 0x00020000")
    g(f"v_and_b32 v{T}, 31, v{vLane}")
    g(f"v_lshrrev_b32 v{T+1}, 5, v{vLane}")
    g(f"v_lshlrev_b32 v{vQoff}, 6, v{T}")
    g(f"v_lshl_add_u32 v{vQoff}, v{T+1}, 4, v{vQoff}")
    QR = 16
    for j in range(2):
        for h in range(2):
            g(f"buffer_load_dwordx4 {r(QR + 8*j + 4*h, 4)}, v{vQoff}, s[{sQ}:{sQ+3}], 0 offen offset:{j*2048 + h*32}")
    for c in range(1, NS - 1):
        dma_chunk()
    g(f"v_lshrrev_b32 v{T+2}, 2, v{T}")
    g(f"v_and_b32 v{T+2}, 3, v{T+2}")
    g(f"v_xor_b32 v{T+2}, v{T+2}, v{T+1}")
    g(f"v_lshlrev_b32 v{T+2}, 4, v{T+2}")
    g(f"v_lshl_add_u32 v{KA0}, v{T}, 6, v{T+2}")
    g(f"v_xor_b32 v{KA1}, 32, v{KA0}")
    g(f"v_and_b32 v{T+2}, 15, v{vLane}")
    g(f"v_lshrrev_b32 v{T+2}, 2, v{T+2}")
    g(f"v_lshl_add_u32 v{T+2}, v{T+1}, 3, v{T+2}")
    g(f"v_lshlrev_b32 v{T+2}, 6, v{T+2}")
    g(f"v_lshrrev_b32 v{T+3}, 4, v{vLane}")
    g(f"v_and_b32 v{T+3}, 1, v{T+3}")
    g(f"v_lshl_add_u32 v{T+2}, v{T+3}, 5, v{T+2}")
    g(f"v_and_b32 v{T+3}, 3, v{vLane}")
    g(f"v_lshl_add_u32 v{T+2}, v{T+3}, 3, v{T+2}")
    g(f"v_add_u32 v{VA}, 8192, v{T+2}")
    g(f"v_lshrrev_b32 v{T+2}, 2, v{vLane}")
    g(f"v_and_b32 v{T+2}, 1, v{T+2}")
    g(f"v_cmp_eq_u32 vcc, 0, v{T+2}")
    g(f"v_mov_b32 v{T+3}, 0x3f803f80")
    g(f"v_mov_b32 v{IDX}, 0xdddd")
    g(f"v_cndmask_b32 v{ONES}, 0, v{T+3}, vcc")
    g(f"v_cndmask_b32 v{ONES+1}, 0, v{T+3}, vcc")
    g(f"v_cndmask_b32 v{ONES+2}, v{T+3}, 0, vcc")
    g(f"v_cndmask_b32 v{ONES+3}, v{T+3}, 0, vcc")
    for j in range(2):
        for i in range(16): g(f"v_mov_b32 v{O[j]+i}, 0")
        for i in range(4): g(f"v_mov_b32 v{Lr[j]+i}, 0")
    for i in range(8, 16): g(f"v_mov_b32 v{S[3]+i}, 0")
    for i in range(4): g(f"v_mov_b32 v{V[1][1]+i}, 0")
    g(f"s_mov_b32 s{sC}, 0x{f32bits(1.4426950408889634 * 32 ** -0.5):08x}")
    if INSTR: g("s_memtime s[68:69]")
    g(f"s_waitcnt vmcnt({2*(NS-2)})")
    if INSTR: g("s_memtime s[64:65]")
    for j in range(2):
        for h in range(2):
            for i in range(4):
                src = QR + 8*j + 4*h + i
                g(f"v_lshlrev_b32 v{T}, 16, v{src}")
                g(f"v_and_b32 v{T+1}, 0xffff0000, v{src}")
                g(f"v_mul_f32 v{T}, s{sC}, v{T}")
                g(f"v_mul_f32 v{T+1}, s{sC}, v{T+1}")
                g(f"v_cvt_pk_bf16_f32 v{Q[j][h]+i}, v{T}, v{T+1}")
    g("s_barrier")
    if INSTR:
        g("s_memtime s[66:67]")
        g("s_waitcnt lgkmcnt(0)")
    def kread(buf, kt, inloop=False):
        if inloop and NODS: return
        g(f"ds_read_b128 {r(K[buf][0],4)}, v{KA0} offset:{kt*2048}")
        g(f"ds_read_b128 {r(K[buf][1],4)}, v{KA1} offset:{kt*2048}")
    def vread(buf, kt, inloop=False):
        if inloop and NODS: return
        g(f"ds_read_b64_tr_b16 {r(V[buf][0],2)}, v{VA} offset:{kt*2048}")
        g(f"ds_read_b64_tr_b16 {r(V[buf][0]+2,2)}, v{VA} offset:{kt*2048+256}")
        g(f"ds_read_b64_tr_b16 {r(V[buf][1],2)}, v{VA} offset:{kt*2048+1024}")
        g(f"ds_read_b64_tr_b16 {r(V[buf][1]+2,2)}, v{VA} offset:{kt*2048+1280}")
    kread(0, 0); vread(0, 0); kread(1, 1)
    g("s_waitcnt lgkmcnt(6)")
    def qk(dst, kbuf, j, cin):
        g(f"v_mfma_f32_32x32x16_bf16 {r(dst,16)}, {r(K[kbuf][0],4)}, {r(Q[j][0],4)}, {cin}")
        g(f"v_mfma_f32_32x32x16_bf16 {r(dst,16)}, {r(K[kbuf][1],4)}, {r(Q[j][1],4)}, {r(dst,16)}")
    qk(S[0], 0, 0, "0"); qk(S[1], 0, 1, "0")
    g("s_nop 15")
    def rowmax_to_C(sbuf, j, first=True):
        m = T + 4 * j
        g(f"v_max3_f32 v{m}, v{sbuf}, v{sbuf+1}, v{sbuf+2}")
        for i in range(3, 15, 2):
            g(f"v_max3_f32 v{m}, v{m}, v{sbuf+i}, v{sbuf+i+1}")
        g(f"v_max_f32 v{m}, v{m}, v{sbuf+15}")
        g(f"v_mov_b32 v{m+1}, v{m}")
        g("s_nop 1")
        g(f"v_permlane32_swap_b32 v{m}, v{m+1}")
        g("s_nop 1")
        g(f"v_max_f32 v{m}, v{m}, v{m+1}")
        g(f"v_sub_f32 v{m}, 0, v{m}")
        for i in range(16): g(f"v_mov_b32 v{CB[j]+i}, v{m}")
    rowmax_to_C(S[0], 0); rowmax_to_C(S[1], 1)
    g("s_nop 1")
    qk(S[0], 0, 0, r(CB[0], 16))
    if INSTR:
        g("s_memtime s[42:43]")
        g("s_waitcnt lgkmcnt(0)")
    g(f"s_mov_b32 s{sIt}, 0")
    g("s_nop 7")
    g("s_nop 1")
    g.L.append(".p2align 6")
    g.label("L_loop")
    def pv(j, vb, half, sbuf):
        g(f"v_smfmac_f32_32x32x32_bf16 {r(O[j],16)}, {r(V[vb][half],4)}, {r(sbuf + 8*half, 8)}, v{IDX}")
    def ls(j, half, sbuf):
        g(f"v_smfmac_f32_16x16x64_bf16 {r(Lr[j],4)}, {r(ONES,4)}, {r(sbuf + 8*half, 8)}, v{IDX}")
    for n in range(8):
        kt, j = n // 2, n % 2
        sb = S[n % 4]; sprev = S[(n - 1) % 4]; snext = S[(n + 1) % 4]
        ktn, jn = ((n + 1) // 2), (n + 1) % 2
        ktp, jp = ((n - 1) // 2), (n - 1) % 2
        e = iter(range(16))
        def ex(k):
            for _ in range(k):
                i = next(e); g(f"v_exp_f32 v{sb+i}, v{sb+i}")
        g.c(f"---- step {n}: kt={kt} j={j}")
        if PRIO == 1 and n % 2 == 0:
            g(f"s_setprio {3 - ((n // 2 + 2) % 4)}")
        if PRIO == 2:
            g(f"s_setprio {1 - n % 2}")
        if n == 5 and not NOBAR:
            g(f"s_cmp_lt_u32 s{sIt}, {NCH - (NS - 1)}")
            g("s_cbranch_scc0 L_tail_wait")
            g(f"s_waitcnt vmcnt({2*(NS-3)})")
            g("s_barrier")
            dma_chunk()
            g("s_branch L_wait_done")
            g.label("L_tail_wait")
            g("s_waitcnt vmcnt(0)")
            g("s_barrier")
            g.label("L_wait_done")
            g(f"v_add_u32 v{KA0}, {CH}, v{KA0}")
            g(f"v_add_u32 v{KA1}, {CH}, v{KA1}")
            g(f"v_and_b32 v{KA0}, {LDS-1}, v{KA0}")
            g(f"v_and_b32 v{KA1}, {LDS-1}, v{KA1}")
        if n % 2 == 1:
            if not NOWAIT: g("s_waitcnt lgkmcnt(4)")
        g(f"v_mfma_f32_32x32x16_bf16 {r(snext,16)}, {r(K[ktn%2][0],4)}, {r(Q[jn][0],4)}, {r(CB[jn],16)}")
        ex(3)
        g(f"v_mfma_f32_32x32x16_bf16 {r(snext,16)}, {r(K[ktn%2][1],4)}, {r(Q[jn][1],4)}, {r(snext,16)}")
        if n % 2 == 1:
            kread(kt % 2, (kt + 2) % 4, True)
        ex(3)
        pv(jp, ktp % 2, 1, sprev)
        if n == 6:
            g(f"v_add_u32 v{VA}, {CH}, v{VA}")
            g(f"v_and_b32 v{VA}, {LDS-1}, v{VA}")
        if n % 2 == 0:
            vread((kt + 1) % 2, (kt + 1) % 4, True)
        ex(3)
        ls(jp, 1, sprev)
        ex(2)
        if n % 2 == 0:
            if not NOWAIT: g("s_waitcnt lgkmcnt(6)")
        pv(j, kt % 2, 0, sb)
        ex(3)
        ls(j, 0, sb)
        ex(2)
    g(f"s_add_u32 s{sIt}, s{sIt}, 1")
    g(f"s_cmp_lt_u32 s{sIt}, {NCH}")
    g("s_cbranch_scc1 L_loop")
    g("s_nop 1")
    pv(1, 1, 1, S[3]); ls(1, 1, S[3])
    if INSTR:
        g("s_memtime s[44:45]")
    g("s_waitcnt lgkmcnt(0)")
    g("s_nop 15")
    g("s_nop 3")
    g.label("L_check")
    g(f"v_mul_f32 v{T}, 0, v{Lr[0]}")
    g(f"v_fma_f32 v{T}, v{Lr[1]}, 0, v{T}")
    for j in range(2):
        for i in range(16): g(f"v_fma_f32 v{T}, v{O[j]+i}, 0, v{T}")
    g(f"v_max_f32 v{T+1}, v{Lr[0]}, v{Lr[1]}")
    g(f"v_mov_b32 v{T+2}, 0x5f800000")
    g(f"v_cmp_u_f32 vcc, v{T}, v{T}")
    g(f"v_cmp_nlt_f32 s[38:39], v{T+1}, v{T+2}")
    g("s_nop 1")
    g("s_or_b64 vcc, vcc, s[38:39]")
    g("s_cmp_lg_u64 vcc, 0")
    g("s_cbranch_scc1 L_fallback")
    g.label("L_final")
    for j in range(2):
        g(f"v_rcp_f32 v{T}, v{Lr[j]}")
        g("s_nop 0")
        for i in range(16): g(f"v_mul_f32 v{O[j]+i}, v{O[j]+i}, v{T}")
        P = 16 + 8 * j
        for gq in range(4):
            g(f"v_cvt_pk_bf16_f32 v{P+2*gq}, v{O[j]+4*gq}, v{O[j]+4*gq+1}")
            g(f"v_cvt_pk_bf16_f32 v{P+2*gq+1}, v{O[j]+4*gq+2}, v{O[j]+4*gq+3}")
        g("s_nop 1")
        for pr in range(2):
            b = P + 4 * pr
            g(f"v_permlane32_swap_b32 v{b}, v{b+2}")
            g(f"v_permlane32_swap_b32 v{b+1}, v{b+3}")
        g("s_nop 1")
        for pr in range(2):
            g(f"buffer_store_dwordx4 {r(P+4*pr,4)}, v{vQoff}, s[{sO}:{sO+3}], 0 offen offset:{j*2048 + pr*32}")
    if INSTR:
        g("s_waitcnt vmcnt(0)")
        g("s_memtime s[46:47]")
        g("s_memrealtime s[50:51]")
        g("s_waitcnt lgkmcnt(0)")
        g("s_mov_b32 s56, s52")
        g("s_mov_b32 s57, s53")
        g("s_mov_b32 s58, 0x100000")
        g("s_mov_b32 s59, 0x00020000")
        g(f"s_lshl_b32 s{sTmp}, s2, 3")
        g(f"s_add_u32 s{sTmp}, s{sTmp}, s{sWave}")
        g(f"s_lshl_b32 s{sTmp}, s{sTmp}, 6")
        for i, sr in enumerate((40, 42, 44, 46, 48, 50)):
            g(f"v_mov_b32 v{40+i}, s{sr}")
        g("s_getreg_b32 s60, hwreg(HW_REG_XCC_ID)")
        g("s_getreg_b32 s61, hwreg(HW_REG_HW_ID)")
        g("v_mov_b32 v46, s60")
        g("v_mov_b32 v47, s61")
        g(f"v_mov_b32 v39, s{sTmp}")
        g("s_mov_b64 exec, 1")
        g("buffer_store_dwordx4 v[40:43], v39, s[56:59], 0 offen")
        g("buffer_store_dwordx4 v[44:47], v39, s[56:59], 0 offen offset:16")
        for i, sr in enumerate((62, 68, 64, 66)):
            g(f"v_mov_b32 v{48+i}, s{sr}")
        g("buffer_store_dwordx4 v[48:51], v39, s[56:59], 0 offen offset:32")
        g("s_waitcnt vmcnt(0)")
    g("s_endpgm")
    g.label("L_fallback")
    FB = CH + 0
    M0r, M1r = T + 0, T + 4
    g("s_waitcnt vmcnt(0) lgkmcnt(0)")
    g(f"v_mov_b32 v{M0r}, 0xff800000")
    g(f"v_mov_b32 v{M1r}, 0xff800000")
    g(f"s_mov_b32 s{sGoff}, 0")
    g.label("L_fb_max")
    g(f"buffer_load_dwordx4 {r(K[0][0],4)}, v{vQoff}, s[{sK}:{sK+3}], s{sGoff} offen")
    g(f"buffer_load_dwordx4 {r(K[0][1],4)}, v{vQoff}, s[{sK}:{sK+3}], s{sGoff} offen offset:32")
    g("s_waitcnt vmcnt(0)")
    qk(S[0], 0, 0, "0"); qk(S[1], 0, 1, "0")
    g("s_nop 15")
    for j, m in ((0, M0r), (1, M1r)):
        for i in range(0, 16, 2):
            g(f"v_max3_f32 v{m}, v{m}, v{S[j]+i}, v{S[j]+i+1}")
    g(f"s_add_u32 s{sGoff}, s{sGoff}, 2048")
    g(f"s_cmp_lt_u32 s{sGoff}, 131072")
    g("s_cbranch_scc1 L_fb_max")
    for j, m in ((0, M0r), (1, M1r)):
        g(f"v_mov_b32 v{m+1}, v{m}")
        g("s_nop 1")
        g(f"v_permlane32_swap_b32 v{m}, v{m+1}")
        g("s_nop 1")
        g(f"v_max_f32 v{m}, v{m}, v{m+1}")
        g(f"v_sub_f32 v{m}, 0, v{m}")
        for i in range(16): g(f"v_mov_b32 v{CB[j]+i}, v{m}")
        for i in range(16): g(f"v_mov_b32 v{O[j]+i}, 0")
        for i in range(4): g(f"v_mov_b32 v{Lr[j]+i}, 0")
    g(f"s_lshl_b32 s{sTmp}, s{sWave}, 12")
    g(f"s_add_u32 s{sTmp}, s{sTmp}, {FB}")
    g(f"v_and_b32 v{VA}, 1023, v{VA}")
    g(f"v_add_u32 v{VA}, s{sTmp}, v{VA}")
    g(f"s_add_u32 s{sTmp2}, s{sTmp}, 1024")
    g(f"s_mov_b32 s{sGoff}, 0")
    g.label("L_fb_loop")
    g(f"buffer_load_dwordx4 {r(K[0][0],4)}, v{vQoff}, s[{sK}:{sK+3}], s{sGoff} offen")
    g(f"buffer_load_dwordx4 {r(K[0][1],4)}, v{vQoff}, s[{sK}:{sK+3}], s{sGoff} offen offset:32")
    g(f"s_mov_b32 m0, s{sTmp}")
    g("s_nop 0")
    g(f"buffer_load_dwordx4 v{vDV}, s[{sV}:{sV+3}], s{sGoff} offen lds")
    g(f"buffer_load_dwordx4 v{vDV}, s[{sV}:{sV+3}], s{sGoff} offen offset:1024 lds")
    g("s_waitcnt vmcnt(0)")
    vread(0, 0)
    qk(S[0], 0, 0, r(CB[0], 16)); qk(S[1], 0, 1, r(CB[1], 16))
    g("s_nop 15")
    for j in range(2):
        for i in range(16): g(f"v_exp_f32 v{S[j]+i}, v{S[j]+i}")
    g("s_waitcnt lgkmcnt(0)")
    g("s_nop 1")
    for j in range(2):
        pv(j, 0, 0, S[j]); pv(j, 0, 1, S[j]); ls(j, 0, S[j]); ls(j, 1, S[j])
    g(f"s_add_u32 s{sGoff}, s{sGoff}, 2048")
    g(f"s_cmp_lt_u32 s{sGoff}, 131072")
    g("s_cbranch_scc1 L_fb_loop")
    g("s_nop 15")
    g("s_nop 3")
    g("s_branch L_final")
    g.label("L_end")
    g("s_endpgm")
    hdr = open("cdna_kernels/" + NAME + ".s.ref").read().split("; Override launch")[0]
    out = hdr + f"""; Override launch geometry by editing the next line (default: block=256,
; grid=ceil(out_elems/256), lds=0). Harness parses it; keep it on one line.
; @launch grid=(256,1,1) block=(512,1,1) lds={LDS}
.amdgcn_target "amdgcn-amd-amdhsa--gfx950"
.text
.globl {NAME}_kernel
.p2align 8
.type {NAME}_kernel,@function
{NAME}_kernel:
{g.text()}
.section .rodata,"a"
.p2align 6
.amdhsa_kernel {NAME}_kernel
  .amdhsa_next_free_vgpr 256
  .amdhsa_next_free_sgpr 80
  .amdhsa_accum_offset 256
  .amdhsa_group_segment_fixed_size 0
  .amdhsa_kernarg_size 48
  .amdhsa_user_sgpr_count 2
  .amdhsa_user_sgpr_kernarg_segment_ptr 1
  .amdhsa_system_sgpr_workgroup_id_x 1
.end_amdhsa_kernel
"""
    return out

if __name__ == "__main__":
    out = sys.argv[1] if len(sys.argv) > 1 else f"cdna_kernels/{NAME}.s"
    kw = dict(a.split("=") for a in sys.argv[2:])
    kw = {k: int(v) for k, v in kw.items()}
    open(out, "w").write(gen(**kw))
```

```python
import sys, struct

NAME = "standalone__fused_io_aware_attn__prompt"
def f32bits(x): return struct.unpack("<I", struct.pack("<f", x))[0]

class Gen:
    def __init__(s): s.L = []
    def __call__(s, txt): s.L.append("    " + txt)
    def label(s, l): s.L.append(l + ":")
    def c(s, t): s.L.append("    ; " + t)
    def text(s): return "\n".join(s.L)

def gen(NS=8, R=4, INSTR=0, SLP=12, UNR=1, LO=64):
    g = Gen()
    CK = 4
    D = 2
    KB = CK * 2048
    CH = 2 * KB
    NCH = 64 // CK
    NCHT = NCH + 1
    RING = NS * CH
    READY = RING
    PROG = RING + 1024
    FBL = RING + 2048
    LDS = RING + 2048 + 8192
    U = 0xdddd
    assert R >= D + 1 and R <= NS - 1 and (NCH - 1) % UNR == 0
    S = [0, 16, 32, 48]
    CB = [64, 80]
    O = [96, 112, 128, 144]
    Q = [[160 + 8 * j + 4 * h for h in range(2)] for j in range(4)]
    K = [[192 + 8 * b + 4 * h for h in range(2)] for b in range(2)]
    V = [[208 + 8 * b + 4 * h for h in range(2)] for b in range(2)]
    Lr = [224 + 4 * j for j in range(4)]
    ONES, IDX = 240, 244
    vA, vL16, vSy, vFl, vQoff, vT, vT0 = 245, 246, 247, 248, 249, 250, 251
    T = 252
    def r(b, n): return f"v[{b}:{b+n-1}]"
    sK, sV, sQ, sO = 12, 16, 20, 24
    sWave, sHead, sQB = 28, 29, 30
    sGoff, sBase, sIt, sTmp, sC = 31, 32, 33, 34, 35
    sTmp2, sNeed, sBad, sP, sSpin = 36, 37, 40, 41, 3
    g("s_cmp_ge_u32 s2, 256")
    g("s_cbranch_scc1 L_end")
    if INSTR:
        g("s_memtime s[44:45]")
        g("s_memrealtime s[52:53]")
        g("s_load_dwordx2 s[56:57], s[0:1], 40")
    g("s_load_dwordx4 s[4:7], s[0:1], 0")
    g("s_load_dwordx4 s[8:11], s[0:1], 16")
    g(f"v_lshrrev_b32 v{T}, 6, v0")
    g(f"v_and_b32 v{T+1}, 63, v0")
    g(f"v_readfirstlane_b32 s{sWave}, v{T}")
    g(f"s_and_b32 s{sTmp}, s2, 7")
    g(f"s_lshr_b32 s{sTmp2}, s2, 3")
    g(f"s_lshl_b32 s{sHead}, s{sTmp}, 3")
    g(f"s_lshr_b32 s{sTmp}, s{sTmp2}, 2")
    g(f"s_add_u32 s{sHead}, s{sHead}, s{sTmp}")
    g(f"s_and_b32 s{sQB}, s{sTmp2}, 3")
    g(f"v_lshlrev_b32 v{vL16}, 4, v{T+1}")
    g(f"v_and_b32 v{T}, 31, v{T+1}")
    g(f"v_lshrrev_b32 v{T+2}, 5, v{T+1}")
    g(f"v_lshlrev_b32 v{vQoff}, 6, v{T}")
    g(f"v_lshl_add_u32 v{vQoff}, v{T+2}, 4, v{vQoff}")
    g(f"v_add_u32 v{vFl}, 32, v{vQoff}")
    g(f"s_lshl_b32 s{sTmp}, s{sHead}, 17")
    g(f"s_lshl_b32 s{sTmp2}, s{sQB}, 15")
    g(f"s_lshl_b32 s{sC}, s{sWave}, 13")
    g(f"s_add_u32 s{sTmp2}, s{sTmp2}, s{sC}")
    g(f"s_add_u32 s{sTmp2}, s{sTmp2}, s{sTmp}")
    for sr, n in ((sK, 131072), (sV, 131072), (sQ, 8192), (sO, 8192)):
        g(f"s_mov_b32 s{sr+2}, {n}")
        g(f"s_mov_b32 s{sr+3}, 0x00020000")
    g(f"s_lshl_b32 s{sGoff}, s{sWave}, 11")
    g(f"s_mov_b32 m0, s{sGoff}")
    g(f"s_mov_b32 s{sSpin}, 0x40000")
    g(f"s_cmp_eq_u32 s{sWave}, 4")
    g("s_waitcnt lgkmcnt(0)")
    g("s_cbranch_scc1 L_helper")
    g(f"s_add_u32 s{sK}, s6, s{sTmp}")
    g(f"s_addc_u32 s{sK+1}, s7, 0")
    g(f"s_add_u32 s{sQ}, s4, s{sTmp2}")
    g(f"s_addc_u32 s{sQ+1}, s5, 0")
    g(f"buffer_load_dwordx4 v{vQoff}, s[{sK}:{sK+3}], s{sGoff} offen lds")
    g(f"s_add_u32 s{sBase}, s{sGoff}, 1024")
    g(f"s_mov_b32 m0, s{sBase}")
    g(f"s_add_u32 s{sV}, s8, s{sTmp}")
    g(f"buffer_load_dwordx4 v{vFl}, s[{sK}:{sK+3}], s{sGoff} offen lds")
    g(f"s_addc_u32 s{sV+1}, s9, 0")
    def qload(js):
        for j in js:
            for h in range(2):
                off = j * 2048 + h * 32
                so = "0" if off < 4096 else f"s{sP}"
                g(f"buffer_load_dwordx4 {r(Q[j][h], 4)}, v{vQoff}, s[{sQ}:{sQ+3}], {so} offen offset:{off % 4096}")
    qload((0, 1))
    g(f"s_add_u32 s{sBase}, s{sGoff}, {KB}")
    g(f"s_mov_b32 m0, s{sBase}")
    g(f"s_add_u32 s{sO}, s10, s{sTmp2}")
    g(f"buffer_load_dwordx4 v{vL16}, s[{sV}:{sV+3}], s{sGoff} offen lds")
    g(f"buffer_load_dwordx4 v{vL16}, s[{sV}:{sV+3}], s{sGoff} offen offset:1024 lds")
    g(f"s_addc_u32 s{sO+1}, s11, 0")
    g(f"s_mov_b32 s{sP}, 4096")
    g(f"s_lshl_b32 s{sTmp}, s{sWave}, 8")
    g(f"s_add_u32 s{sTmp}, s{sTmp}, {READY}")
    g(f"v_lshlrev_b32 v{vSy}, 2, v{T+1}")
    g(f"v_add_u32 v{vSy}, s{sTmp}, v{vSy}")
    g(f"v_mov_b32 v{vA}, v{vL16}")
    g(f"v_and_b32 v{T}, 15, v{T+1}")
    g(f"v_lshrrev_b32 v{T}, 2, v{T}")
    g(f"v_lshl_add_u32 v{T}, v{T+2}, 3, v{T}")
    g(f"v_lshlrev_b32 v{T}, 6, v{T}")
    g(f"v_lshrrev_b32 v{T+3}, 4, v{T+1}")
    g(f"v_and_b32 v{T+3}, 1, v{T+3}")
    g(f"v_lshl_add_u32 v{T}, v{T+3}, 5, v{T}")
    g(f"v_and_b32 v{T+3}, 3, v{T+1}")
    g(f"v_lshl_add_u32 v{T}, v{T+3}, 3, v{T}")
    g(f"v_add_u32 v{vT0}, {KB}, v{T}")
    g(f"v_mov_b32 v{vT}, v{vT0}")
    g(f"v_lshrrev_b32 v{T+2}, 2, v{T+1}")
    g(f"v_and_b32 v{T+2}, 1, v{T+2}")
    g(f"v_cmp_eq_u32 vcc, 0, v{T+2}")
    g(f"v_mov_b32 v{T+3}, 0x3f803f80")
    g(f"v_mov_b32 v{IDX}, {U:#x}")
    g(f"v_cndmask_b32 v{ONES}, 0, v{T+3}, vcc")
    g(f"v_cndmask_b32 v{ONES+1}, 0, v{T+3}, vcc")
    g(f"v_cndmask_b32 v{ONES+2}, v{T+3}, 0, vcc")
    g(f"v_cndmask_b32 v{ONES+3}, v{T+3}, 0, vcc")
    for j in range(4):
        for i in range(16): g(f"v_mov_b32 v{O[j]+i}, 0")
        for i in range(4): g(f"v_mov_b32 v{Lr[j]+i}, 0")
    cbits = f32bits(1.4426950408889634 * 32 ** -0.5)
    g(f"s_mov_b32 s{sC}, 0x{cbits:08x}")
    g(f"s_mov_b32 s{sBase}, 0")
    g(f"s_mov_b32 s{sNeed}, 0")
    g(f"s_mov_b32 s{sBad}, 0")
    if INSTR == 1: g("s_memtime s[60:61]")
    g("s_waitcnt vmcnt(2)")
    if INSTR == 1: g("s_memtime s[62:63]")
    def qscale(js):
        for j in js:
            for h in range(2):
                for i in range(4):
                    x = Q[j][h] + i
                    t = T + 2 * (i % 2)
                    g(f"v_lshlrev_b32 v{t}, 16, v{x}")
                    g(f"v_and_b32 v{t+1}, 0xffff0000, v{x}")
                    g(f"v_mul_f32 v{t}, s{sC}, v{t}")
                    g(f"v_mul_f32 v{t+1}, s{sC}, v{t+1}")
                    g(f"v_cvt_pk_bf16_f32 v{x}, v{t}, v{t+1}")
    qscale((0, 1))
    g("s_waitcnt vmcnt(0)")
    qload((2, 3))
    g("s_barrier")
    if INSTR == 1:
        g("s_memtime s[64:65]")
        g("s_waitcnt lgkmcnt(0)")
    def kread1(kt, h):
        g(f"ds_read_b128 {r(K[kt%2][h],4)}, v{vA} offset:{(kt % CK) * 2048 + 1024*h}")
    def vread1(kt, i):
        g(f"ds_read_b64_tr_b16 {r(V[kt%2][i//2] + 2*(i%2),2)}, v{vT} offset:{(kt % CK) * 2048 + (0, 256, 1024, 1280)[i]}")
    def qk(dst, kbuf, j, cin):
        g(f"v_mfma_f32_32x32x16_bf16 {r(dst,16)}, {r(K[kbuf][0],4)}, {r(Q[j][0],4)}, {cin}")
        g(f"v_mfma_f32_32x32x16_bf16 {r(dst,16)}, {r(K[kbuf][1],4)}, {r(Q[j][1],4)}, {r(dst,16)}")
    def pairmax(sa, sb_, cb):
        m = T
        g(f"v_max3_f32 v{m}, v{sa}, v{sa+1}, v{sa+2}")
        g(f"v_max3_f32 v{m+1}, v{sa+3}, v{sa+4}, v{sa+5}")
        g(f"v_max3_f32 v{m+2}, v{sa+6}, v{sa+7}, v{sa+8}")
        g(f"v_max3_f32 v{m+3}, v{sa+9}, v{sa+10}, v{sa+11}")
        g(f"v_max3_f32 v{m}, v{m}, v{sa+12}, v{sa+13}")
        g(f"v_max3_f32 v{m+1}, v{m+1}, v{sa+14}, v{sa+15}")
        for i in range(8):
            g(f"v_max3_f32 v{m+i%4}, v{m+i%4}, v{sb_+2*i}, v{sb_+2*i+1}")
        g(f"v_max3_f32 v{m}, v{m}, v{m+2}, v{m+3}")
        g(f"v_max_f32 v{m}, v{m}, v{m+1}")
        finish_max(m, cb)
    def finish_max(m, cb):
        g(f"v_mov_b32 v{m+1}, v{m}")
        g("s_nop 1")
        g(f"v_permlane32_swap_b32 v{m}, v{m+1}")
        g("s_nop 1")
        g(f"v_max_f32 v{m}, v{m}, v{m+1}")
        g(f"v_sub_f32 v{m}, 0, v{m}")
        for i in range(16): g(f"v_mov_b32 v{CB[cb]+i}, v{m}")
    kread1(0, 0); kread1(0, 1)
    for i in range(4): vread1(0, i)
    kread1(1, 0); kread1(1, 1)
    g("s_waitcnt lgkmcnt(6)")
    qk(S[0], 0, 0, "0"); qk(S[1], 0, 1, "0")
    g("s_nop 7")
    g("s_nop 1")
    pairmax(S[0], S[1], 0)
    g("s_nop 1")
    qk(S[0], 0, 0, r(CB[0], 16))
    g("s_waitcnt lgkmcnt(0)")
    if INSTR:
        g("s_memtime s[46:47]")
        g("s_waitcnt lgkmcnt(0)")
    g("s_nop 7")
    g("s_nop 1")
    def pv(j, vb, half, sbuf):
        g(f"v_smfmac_f32_32x32x32_bf16 {r(O[j],16)}, {r(V[vb][half],4)}, {r(sbuf + 8*half, 8)}, v{IDX}")
    def ls(j, half, sbuf):
        g(f"v_smfmac_f32_16x16x64_bf16 {r(Lr[j],4)}, {r(ONES,4)}, {r(sbuf + 8*half, 8)}, v{IDX}")
    slow = []
    def region(name, order, prev_j, next_j, has_next, hooks=None, extra=None, skip_last2=False, lead2=False):
        NQ = len(order)
        NST = NQ * CK
        sched = {}
        def at(kt, jj, slot, fn): sched.setdefault((kt * NQ + jj, slot), []).append(fn)
        kj = 2 if NQ == 4 else 1
        for kt in range(CK):
            at(kt, 0, "pv2", lambda: g("s_waitcnt lgkmcnt(0)"))
            if kt + 1 < CK or has_next:
                if kt + 1 == CK: at(kt, 0, "qkb", lambda: g(f"v_add_u32 v{vT}, s{sBase}, v{vT0}"))
                if NQ == 4:
                    for i, (jj, sl) in enumerate(((0, "l2"), (0, "l1"), (1, "l2"), (1, "l1"))):
                        at(kt, jj, sl, lambda kt=kt, i=i: vread1(kt + 1, i))
                else:
                    for i, sl in enumerate(("l2", "l2", "l1", "l1")):
                        at(kt, 0, sl, lambda kt=kt, i=i: vread1(kt + 1, i))
            if kt + 2 < CK or has_next:
                if kt + 2 == CK: at(kt, kj, "qkb", lambda: g(f"v_add_u32 v{vA}, s{sBase}, v{vL16}"))
                at(kt, kj, "l2", lambda kt=kt: kread1(kt + 2, 0))
                at(kt, kj, "l1", lambda kt=kt: kread1(kt + 2, 1))
        if has_next:
            if NQ == 4: at(CK - 3, 3, "l2", lambda: g(f"ds_read_b32 v{vFl}, v{vSy}"))
            else: at(CK - 3, 1, "pv1", lambda: g(f"ds_read_b32 v{vFl}, v{vSy}"))
            cj = kj - 1
            at(CK - 2, cj, "qka" if NQ == 4 else "pv1", lambda: g(f"s_add_u32 s{sNeed}, s{sNeed}, 1"))
            at(CK - 2, cj, "qkb" if NQ == 4 else "pv1", lambda: g(f"s_add_u32 s{sBase}, s{sBase}, {CH}"))
            if NQ == 4:
                at(CK - 2, cj, "qkb", lambda: g(f"v_readfirstlane_b32 s{sTmp}, v{vFl}"))
                at(CK - 2, cj, "pv2", lambda: g(f"s_and_b32 s{sBase}, s{sBase}, {RING-1}"))
            else:
                at(CK - 2, cj, "pv1", lambda: g(f"v_readfirstlane_b32 s{sTmp}, v{vFl}"))
                at(CK - 2, cj, "pv1", lambda: g(f"s_and_b32 s{sBase}, s{sBase}, {RING-1}"))
            def chk():
                g(f"s_cmp_ge_u32 s{sTmp}, s{sNeed}")
                g(f"s_cbranch_scc0 L_slow_{name}")
                g.label(f"L_ok_{name}")
                slow.append(name)
            at(CK - 2, cj, "pv1", chk)
            at(CK - 1, NQ - 1 if NQ == 4 else 0, "l2" if NQ == 4 else "pv1", lambda: g(f"ds_add_u32 v{vSy}, v{IDX} offset:1024"))
        if extra:
            for k, fns in extra.items(): sched.setdefault(k, []).extend(fns)
        for n in range(NST):
            kt, jj = n // NQ, n % NQ
            j = order[jj]
            sb = S[n % 4]; sprev = S[(n - 1) % 4]; snext = S[(n + 1) % 4]
            if n == 0: prev = None if prev_j is None else (CK - 1, prev_j)
            else: prev = ((n - 1) // NQ, order[(n - 1) % NQ])
            if n == NST - 1: nxt = None if next_j is None else (CK, next_j)
            else: nxt = ((n + 1) // NQ, order[(n + 1) % NQ])
            e = iter(range(16))
            def ex(k):
                for _ in range(k):
                    i = next(e); g(f"v_exp_f32 v{sb+i}, v{sb+i}")
            def slot(nm):
                for fn in sched.get((n, nm), []): fn()
            g.c(f"---- {name} step {n}: kt={kt} j={j}")
            if n == 0 and lead2:
                g(f"v_exp_f32 v{sprev+14}, v{sprev+14}")
                g(f"v_exp_f32 v{sprev+15}, v{sprev+15}")
            if hooks and (n, "top") in hooks: hooks[(n, "top")]()
            if nxt: g(f"v_mfma_f32_32x32x16_bf16 {r(snext,16)}, {r(K[nxt[0]%2][0],4)}, {r(Q[nxt[1]][0],4)}, {r(CB[nxt[1]//2],16)}")
            slot("qka")
            ex(3)
            if nxt: g(f"v_mfma_f32_32x32x16_bf16 {r(snext,16)}, {r(K[nxt[0]%2][1],4)}, {r(Q[nxt[1]][1],4)}, {r(snext,16)}")
            slot("qkb")
            ex(3)
            if prev: pv(prev[1], prev[0] % 2, 1, sprev)
            slot("pv2")
            ex(3)
            if prev: ls(prev[1], 1, sprev)
            slot("l2")
            ex(2)
            pv(j, kt % 2, 0, sb)
            slot("pv1")
            ex(3)
            ls(j, 0, sb)
            slot("l1")
            if not (skip_last2 and n == NST - 1): ex(2)
            if hooks and (n, "end") in hooks: hooks[(n, "end")]()
    def q23():
        g.c("Q tiles 2,3: scale, stand-in max from chunk 1 tile 0")
        g("s_waitcnt vmcnt(0)")
        qscale((2, 3))
        g("s_nop 1")
        qk(S[0], 0, 2, "0"); qk(S[1], 0, 3, "0")
        g("s_nop 7")
        g("s_nop 1")
        pairmax(S[0], S[1], 1)
        g("s_nop 1")
    region("head", (0, 1), None, 2, True, hooks={(2 * CK - 1, "top"): q23},
           extra={(2 * CK - 1, "pv1"): [lambda: g(f"s_mov_b32 s{sIt}, 1")]}, skip_last2=True)
    if INSTR == 2: g("s_memtime s[60:61]")
    g.L.append(".p2align 6")
    g.label("L_loop")
    for u in range(UNR):
        ex_ = None
        if u == UNR - 1:
            ex_ = {(4 * CK - 1, "pv1"): [lambda: g(f"s_add_u32 s{sIt}, s{sIt}, {UNR}"), lambda: g(f"s_cmp_lt_u32 s{sIt}, {NCH}")]}
        region(f"body{u}", (2, 3, 0, 1), 1, 2, True, extra=ex_, skip_last2=True, lead2=True)
    if INSTR == 2:
        g("s_cbranch_scc0 L_exit")
        g(f"s_cmp_eq_u32 s{sIt}, {1 + UNR}")
        g("s_cbranch_scc0 L_loop")
        g("s_memtime s[62:63]")
        g("s_branch L_loop")
        g.label("L_exit")
        g("s_memtime s[64:65]")
    else:
        g("s_cbranch_scc1 L_loop")
    def check_store(js, bit, P):
        a, b = js
        X = P
        first = True
        for x, j in enumerate(js):
            for i in range(0, 16, 2):
                t = X + (i // 2) % 4
                if x == 0 and i < 8: g(f"v_maximum3_f32 v{t}, abs(v{O[j]+i}), abs(v{O[j]+i+1}), v{Lr[a]}")
                else: g(f"v_maximum3_f32 v{t}, abs(v{O[j]+i}), abs(v{O[j]+i+1}), v{t}")
        g(f"v_maximum3_f32 v{X}, v{X}, v{X+1}, v{X+2}")
        g(f"v_maximum3_f32 v{X+4}, v{Lr[a]}, v{Lr[b]}, v{Lr[b]}")
        g(f"v_minimum3_f32 v{X+5}, v{Lr[a]}, v{Lr[b]}, v{Lr[b]}")
        g(f"v_maximum3_f32 v{X}, v{X}, v{X+3}, v{X+3}")
        g(f"v_mov_b32 v{X+1}, 0x5f800000")
        g(f"v_mov_b32 v{X+2}, 0x{(127 - LO) << 23:08x}")
        g(f"v_mov_b32 v{X+3}, 0x7f800000")
        g(f"v_cmp_nlt_f32 s[38:39], v{X+4}, v{X+1}")
        g(f"v_cmp_nlt_f32 vcc, v{X}, v{X+3}")
        g(f"v_cmp_nge_f32 s[42:43], v{X+5}, v{X+2}")
        g("s_nop 1")
        g("s_or_b64 vcc, vcc, s[38:39]")
        g("s_or_b64 vcc, vcc, s[42:43]")
        g("s_cmp_lg_u64 vcc, 0")
        g(f"s_cselect_b32 s{sTmp}, {bit}, 0")
        g(f"s_or_b32 s{sBad}, s{sBad}, s{sTmp}")
        final_store(js, P, None)
    def final_store(js, P, soff):
        a, b = js
        g(f"v_rcp_f32 v{T}, v{Lr[a]}")
        g(f"v_rcp_f32 v{T+2}, v{Lr[b]}")
        g(f"v_mov_b32 v{T+1}, v{T}")
        g(f"v_mov_b32 v{T+3}, v{T+2}")
        for x, j in enumerate(js):
            for i in range(0, 16, 2): g(f"v_pk_mul_f32 {r(O[j]+i,2)}, {r(O[j]+i,2)}, {r(T+2*x,2)}")
            PP = P + 8 * x
            for gq in range(4):
                g(f"v_cvt_pk_bf16_f32 v{PP+2*gq}, v{O[j]+4*gq}, v{O[j]+4*gq+1}")
                g(f"v_cvt_pk_bf16_f32 v{PP+2*gq+1}, v{O[j]+4*gq+2}, v{O[j]+4*gq+3}")
            g("s_nop 1")
            for pr in range(2):
                bb = PP + 4 * pr
                g(f"v_permlane32_swap_b32 v{bb}, v{bb+2}")
                g(f"v_permlane32_swap_b32 v{bb+1}, v{bb+3}")
            g("s_nop 1")
            for pr in range(2):
                if soff is None:
                    off = j * 2048 + pr * 32
                    so = "0" if off < 4096 else f"s{sP}"
                    g(f"buffer_store_dwordx4 {r(PP+4*pr,4)}, v{vQoff}, s[{sO}:{sO+3}], {so} offen offset:{off % 4096}")
                else:
                    g(f"buffer_store_dwordx4 {r(PP+4*pr,4)}, v{vQoff}, s[{sO}:{sO+3}], s{soff} offen offset:{x*2048 + pr*32}")
    region("tail", (2, 3), 1, None, False, hooks={(1, "end"): lambda: check_store((0, 1), 1, Q[0][0])}, lead2=True)
    g("s_nop 1")
    pv(3, (CK - 1) % 2, 1, S[3]); ls(3, 1, S[3])
    if INSTR: g("s_memtime s[48:49]")
    g("s_nop 15")
    check_store((2, 3), 2, Q[2][0])
    g(f"s_cmp_lg_u32 s{sBad}, 0")
    g("s_cbranch_scc1 L_fallback")
    g.label("L_done")
    if INSTR:
        g("s_waitcnt vmcnt(0)")
        g("s_memtime s[50:51]")
        g("s_memrealtime s[54:55]")
        g("s_waitcnt lgkmcnt(0)")
        g("s_mov_b32 s68, s56")
        g("s_mov_b32 s69, s57")
        g("s_mov_b32 s70, 0x100000")
        g("s_mov_b32 s71, 0x00020000")
        g(f"s_lshl_b32 s{sTmp}, s2, 2")
        g(f"s_add_u32 s{sTmp}, s{sTmp}, s{sWave}")
        g(f"s_lshl_b32 s{sTmp}, s{sTmp}, 6")
        g("s_getreg_b32 s58, hwreg(HW_REG_XCC_ID)")
        g("s_getreg_b32 s59, hwreg(HW_REG_HW_ID)")
        for i, sr in enumerate((44, 46, 48, 50, 52, 54, 58, 59, 60, 60, 62, 64)):
            g(f"v_mov_b32 v{40+i}, s{sr}")
        g(f"v_mov_b32 v39, s{sTmp}")
        g("s_mov_b64 exec, 1")
        g("buffer_store_dwordx4 v[40:43], v39, s[68:71], 0 offen")
        g("buffer_store_dwordx4 v[44:47], v39, s[68:71], 0 offen offset:16")
        g("buffer_store_dwordx4 v[48:51], v39, s[68:71], 0 offen offset:32")
        g("s_waitcnt vmcnt(0)")
    g("s_endpgm")
    for name in slow:
        g.label(f"L_slow_{name}")
        g(f"s_sub_u32 s{sSpin}, s{sSpin}, 1")
        g("s_cbranch_scc1 L_end")
        g("s_sleep 1")
        g(f"ds_read_b32 v{vFl}, v{vSy}")
        g("s_waitcnt lgkmcnt(0)")
        g(f"v_readfirstlane_b32 s{sTmp}, v{vFl}")
        g("s_nop 0")
        g(f"s_cmp_ge_u32 s{sTmp}, s{sNeed}")
        g(f"s_cbranch_scc0 L_slow_{name}")
        g(f"s_branch L_ok_{name}")
    g.label("L_fallback")
    g("s_waitcnt vmcnt(0) lgkmcnt(0)")
    g(f"s_lshl_b32 s{sBase}, s{sWave}, 11")
    g(f"s_add_u32 s{sBase}, s{sBase}, {FBL}")
    g(f"s_sub_u32 s{sTmp}, s{sBase}, {KB}")
    g(f"v_add_u32 v{vT}, s{sTmp}, v{vT0}")
    g(f"s_mov_b32 s{sP}, 0")
    g.label("L_fb_pair")
    g(f"s_and_b32 s{sTmp}, s{sBad}, 1")
    g("s_cbranch_scc0 L_fb_next")
    for j in range(2):
        for h in range(2):
            g(f"buffer_load_dwordx4 {r(Q[j][h], 4)}, v{vQoff}, s[{sQ}:{sQ+3}], s{sP} offen offset:{j*2048 + h*32}")
    g("s_waitcnt vmcnt(0)")
    qscale((0, 1))
    M0r, M1r = S[2], S[2] + 4
    g(f"v_mov_b32 v{M0r}, 0xff800000")
    g(f"v_mov_b32 v{M1r}, 0xff800000")
    g(f"s_mov_b32 s{sGoff}, 0")
    g.label("L_fb_max")
    g(f"buffer_load_dwordx4 {r(K[0][0],4)}, v{vQoff}, s[{sK}:{sK+3}], s{sGoff} offen")
    g(f"buffer_load_dwordx4 {r(K[0][1],4)}, v{vQoff}, s[{sK}:{sK+3}], s{sGoff} offen offset:32")
    g("s_waitcnt vmcnt(0)")
    qk(S[0], 0, 0, "0"); qk(S[1], 0, 1, "0")
    g("s_nop 15")
    for j, m in ((0, M0r), (1, M1r)):
        for i in range(0, 16, 2):
            g(f"v_max3_f32 v{m}, v{m}, v{S[j]+i}, v{S[j]+i+1}")
    g(f"s_add_u32 s{sGoff}, s{sGoff}, 2048")
    g(f"s_cmp_lt_u32 s{sGoff}, 131072")
    g("s_cbranch_scc1 L_fb_max")
    for j, m in ((0, M0r), (1, M1r)):
        finish_max(m, j)
        for i in range(16): g(f"v_mov_b32 v{O[j]+i}, 0")
        for i in range(4): g(f"v_mov_b32 v{Lr[j]+i}, 0")
    g(f"s_mov_b32 s{sGoff}, 0")
    g.label("L_fb_loop")
    g(f"buffer_load_dwordx4 {r(K[0][0],4)}, v{vQoff}, s[{sK}:{sK+3}], s{sGoff} offen")
    g(f"buffer_load_dwordx4 {r(K[0][1],4)}, v{vQoff}, s[{sK}:{sK+3}], s{sGoff} offen offset:32")
    g(f"s_mov_b32 m0, s{sBase}")
    g("s_nop 0")
    g(f"buffer_load_dwordx4 v{vL16}, s[{sV}:{sV+3}], s{sGoff} offen lds")
    g(f"buffer_load_dwordx4 v{vL16}, s[{sV}:{sV+3}], s{sGoff} offen offset:1024 lds")
    g("s_waitcnt vmcnt(0)")
    for i in range(4): vread1(0, i)
    qk(S[0], 0, 0, r(CB[0], 16)); qk(S[1], 0, 1, r(CB[1], 16))
    g("s_nop 15")
    for j in range(2):
        for i in range(16): g(f"v_exp_f32 v{S[j]+i}, v{S[j]+i}")
    g("s_waitcnt lgkmcnt(0)")
    g("s_nop 1")
    for j in range(2):
        pv(j, 0, 0, S[j]); pv(j, 0, 1, S[j]); ls(j, 0, S[j]); ls(j, 1, S[j])
    g(f"s_add_u32 s{sGoff}, s{sGoff}, 2048")
    g(f"s_cmp_lt_u32 s{sGoff}, 131072")
    g("s_cbranch_scc1 L_fb_loop")
    g("s_nop 15")
    g("s_nop 3")
    final_store((0, 1), S[2], sP)
    g("s_waitcnt vmcnt(0)")
    g.label("L_fb_next")
    g(f"s_lshr_b32 s{sBad}, s{sBad}, 1")
    g(f"s_add_u32 s{sP}, s{sP}, 4096")
    g(f"s_cmp_lt_u32 s{sP}, 8192")
    g("s_cbranch_scc1 L_fb_pair")
    g("s_branch L_done")
    g.label("L_helper")
    hW, hZ, hPa, hP, hOne, hR = 4, 8, 12, 13, 14, 15
    sC_, sX, sM, sG = 31, 32, 33, 35
    g(f"s_add_u32 s{sK}, s6, s{sTmp}")
    g(f"s_addc_u32 s{sK+1}, s7, 0")
    g(f"s_add_u32 s{sV}, s8, s{sTmp}")
    g(f"s_addc_u32 s{sV+1}, s9, 0")
    def dma():
        g(f"s_and_b32 s{sM}, s{sX}, {NS-1}")
        g(f"s_lshl_b32 s{sM}, s{sM}, {CH.bit_length()-1}")
        g(f"s_and_b32 s{sG}, s{sX}, {NCH-1}")
        g(f"s_lshl_b32 s{sG}, s{sG}, {KB.bit_length()-1}")
        g(f"s_add_u32 s{sTmp2}, s{sG}, 4096")
        for half in range(2):
            so = sG if half == 0 else sTmp2
            for h in range(2):
                g(f"s_add_u32 s{sTmp}, s{sM}, {h*1024 + half*4096}")
                g(f"s_mov_b32 m0, s{sTmp}")
                g("s_nop 0")
                g(f"buffer_load_dwordx4 v{vQoff if h == 0 else vFl}, s[{sK}:{sK+3}], s{so} offen lds")
                g(f"buffer_load_dwordx4 v{vQoff if h == 0 else vFl}, s[{sK}:{sK+3}], s{so} offen offset:2048 lds")
        for half in range(2):
            so = sG if half == 0 else sTmp2
            g(f"s_add_u32 s{sTmp}, s{sM}, {KB + half*4096}")
            g(f"s_mov_b32 m0, s{sTmp}")
            g("s_nop 0")
            for i in range(4):
                g(f"buffer_load_dwordx4 v{vL16}, s[{sV}:{sV+3}], s{so} offen offset:{i*1024} lds")
        g(f"s_add_u32 s{sX}, s{sX}, 1")
    for i in range(4): g(f"v_mov_b32 v{hZ+i}, 0")
    g(f"v_add_u32 v{hW}, {READY}, v{vL16}")
    g(f"ds_write_b128 v{hW}, {r(hZ,4)}")
    g(f"ds_write_b128 v{hW}, {r(hZ,4)} offset:1024")
    g(f"v_and_b32 v{hP}, 3, v{T+1}")
    g(f"v_lshlrev_b32 v{hPa}, 8, v{hP}")
    g(f"v_add_u32 v{hPa}, {PROG}, v{hPa}")
    g(f"v_mov_b32 v{hOne}, 1")
    g(f"v_lshlrev_b32 v{hR}, 2, v{T+1}")
    g(f"v_add_u32 v{hR}, {READY}, v{hR}")
    g(f"s_mov_b32 s{sX}, 1")
    dma()
    g("s_waitcnt lgkmcnt(0)")
    g("s_barrier")
    dma()
    g(f"s_mov_b32 s{sC_}, 1")
    g.label("L_hloop")
    g(f"s_add_u32 s{sC_}, s{sC_}, 1")
    g(f"s_cmp_lt_u32 s{sC_}, {NCHT}")
    g("s_cbranch_scc1 L_hw1")
    g("s_waitcnt vmcnt(0)")
    g.label("L_hw1")
    g(f"s_waitcnt vmcnt({4*CK*(D-1)})")
    for w in range(4): g(f"ds_add_u32 v{hR}, v{hOne} offset:{256*w}")
    g(f"s_cmp_lt_u32 s{sX}, {NCHT}")
    g("s_cbranch_scc0 L_hnodma")
    g(f"s_sub_i32 s{sTmp}, s{sX}, {R}")
    g(f"s_cmp_le_i32 s{sTmp}, 0")
    g("s_cbranch_scc1 L_hgo")
    g(f"s_mul_i32 s{sTmp}, s{sTmp}, {U}")
    g.label("L_hpoll")
    g(f"ds_read_b32 v{hP}, v{hPa}")
    g("s_waitcnt lgkmcnt(0)")
    g("s_setprio 3")
    g(f"v_cmp_gt_u32 vcc, s{sTmp}, v{hP}")
    g("s_setprio 0")
    g("s_nop 0")
    g("s_cmp_eq_u64 vcc, 0")
    g("s_cbranch_scc1 L_hgo")
    g(f"s_sleep {SLP}")
    g(f"s_sub_u32 s{sSpin}, s{sSpin}, 1")
    g("s_cbranch_scc1 L_end")
    g("s_branch L_hpoll")
    g.label("L_hgo")
    dma()
    g.label("L_hnodma")
    g(f"s_cmp_lt_u32 s{sC_}, {NCHT}")
    g("s_cbranch_scc1 L_hloop")
    g("s_waitcnt vmcnt(0) lgkmcnt(0)")
    g.label("L_end")
    g("s_endpgm")
    hdr = open("cdna_kernels/" + NAME + ".s.ref").read().split("; Override launch")[0]
    out = hdr + f"""; Override launch geometry by editing the next line (default: block=256,
; grid=ceil(out_elems/256), lds=0). Harness parses it; keep it on one line.
; @launch grid=(256,1,1) block=(320,1,1) lds={LDS}
.amdgcn_target "amdgcn-amd-amdhsa--gfx950"
.text
.globl {NAME}_kernel
.p2align 8
.type {NAME}_kernel,@function
{NAME}_kernel:
{g.text()}
.section .rodata,"a"
.p2align 6
.amdhsa_kernel {NAME}_kernel
  .amdhsa_next_free_vgpr 256
  .amdhsa_next_free_sgpr {80 if INSTR else 48}
  .amdhsa_accum_offset 256
  .amdhsa_group_segment_fixed_size 0
  .amdhsa_kernarg_size 48
  .amdhsa_user_sgpr_count 2
  .amdhsa_user_sgpr_kernarg_segment_ptr 1
  .amdhsa_system_sgpr_workgroup_id_x 1
.end_amdhsa_kernel
"""
    return out

if __name__ == "__main__":
    out = sys.argv[1] if len(sys.argv) > 1 else f"cdna_kernels/{NAME}.s"
    kw = dict(a.split("=") for a in sys.argv[2:])
    kw = {k: int(v) for k, v in kw.items()}
    open(out, "w").write(gen(**kw))
```

```python
import sys, struct

NAME = "standalone__fused_io_aware_attn__prompt"
def f32bits(x): return struct.unpack("<I", struct.pack("<f", x))[0]

class Gen:
    def __init__(s): s.L = []
    def __call__(s, txt): s.L.append("    " + txt)
    def label(s, l): s.L.append(l + ":")
    def c(s, t): s.L.append("    ; " + t)
    def text(s): return "\n".join(s.L)

def gen(NS=8, R=4, INSTR=0, SLP=12, UNR=1, LO=64, ABL=0, PF=2, W=8, B0=2):
    g = Gen()
    CK = 4
    D = 2
    KB = CK * 2048
    CH = 2 * KB
    NCH = 64 // CK
    NCHT = NCH + 1
    RING = NS * CH
    READY = RING
    PROG = RING + 1024
    FBL = RING + 2048
    LDS = RING + 2048 + 8192
    U = 0xdddd
    assert R >= D + 1 and R <= NS - 1 and (NCH - 1) % UNR == 0
    S = [0, 16, 32, 48]
    CB = [64, 80]
    O = [96, 112, 128, 144]
    Q = [[160 + 8 * j + 4 * h for h in range(2)] for j in range(4)]
    K = [[192 + 8 * b + 4 * h for h in range(2)] for b in range(2)]
    V = [[208 + 8 * b + 4 * h for h in range(2)] for b in range(2)]
    Lr = [224 + 4 * j for j in range(4)]
    ONES, IDX = 240, 244
    vA, vL16, vSy, vFl, vQoff, vT, vT0 = 245, 246, 247, 248, 249, 250, 251
    T = 252
    def r(b, n): return f"v[{b}:{b+n-1}]"
    sK, sV, sQ, sO = 12, 16, 20, 24
    sWave, sHead, sQB = 28, 29, 30
    sGoff, sBase, sIt, sTmp, sC = 31, 32, 33, 34, 35
    sTmp2, sNeed, sBad, sP, sSpin = 36, 37, 40, 41, 3
    def emit_helper():
        NT = NCHT * CK
        g.label("L_helper")
        hW, hZ, hPa, hP, hOne, hR, hOne2, hOne3 = 4, 8, 12, 13, 14, 15, 5, 6
        sC_, sX, sM, sG = 31, 32, 33, 35
        g(f"v_lshlrev_b32 v{vL16}, 4, v{T+1}")
        g(f"v_add_u32 v{vFl}, 32, v{vQoff}")
        for sr, n in ((sK, 131072), (sV, 131072)):
            g(f"s_mov_b32 s{sr+2}, {n}")
            g(f"s_mov_b32 s{sr+3}, 0x00020000")
        g(f"s_mov_b32 s{sX}, 0")
        for i in range(4): g(f"v_mov_b32 v{hZ+i}, 0")
        g(f"v_add_u32 v{hW}, {READY}, v{vL16}")
        g("s_waitcnt lgkmcnt(0)")
        g(f"ds_write_b128 v{hW}, {r(hZ,4)}")
        g(f"ds_write_b128 v{hW}, {r(hZ,4)} offset:1024")
        g(f"s_add_u32 s{sK}, s6, s{sTmp}")
        g(f"s_addc_u32 s{sK+1}, s7, 0")
        g(f"s_add_u32 s{sV}, s8, s{sTmp}")
        g(f"s_addc_u32 s{sV+1}, s9, 0")
        g.label("L_hgo")
        g(f"s_and_b32 s{sM}, s{sX}, {4*(NS-1)}")
        g(f"s_lshl_b32 s{sM}, s{sM}, {CH.bit_length()-1-2}")
        g(f"s_and_b32 s{sTmp}, s{sX}, 3")
        g(f"s_lshl_b32 s{sTmp}, s{sTmp}, 11")
        g(f"s_add_u32 s{sM}, s{sM}, s{sTmp}")
        g(f"s_mov_b32 m0, s{sM}")
        g(f"s_and_b32 s{sG}, s{sX}, 63")
        g(f"s_lshl_b32 s{sG}, s{sG}, 11")
        g(f"buffer_load_dwordx4 v{vQoff}, s[{sK}:{sK+3}], s{sG} offen lds")
        g(f"s_add_u32 s{sTmp}, s{sM}, 1024")
        g(f"s_mov_b32 m0, s{sTmp}")
        g(f"s_add_u32 s{sTmp}, s{sM}, {KB}")
        g(f"buffer_load_dwordx4 v{vFl}, s[{sK}:{sK+3}], s{sG} offen lds")
        g(f"s_mov_b32 m0, s{sTmp}")
        g(f"s_add_u32 s{sX}, s{sX}, 1")
        g(f"buffer_load_dwordx4 v{vL16}, s[{sV}:{sV+3}], s{sG} offen lds")
        g(f"buffer_load_dwordx4 v{vL16}, s[{sV}:{sV+3}], s{sG} offen offset:1024 lds")
        P1 = 4 * (R + 1)
        g(f"s_cmp_eq_u32 s{sX}, {B0}")
        g("s_cbranch_scc0 L_hnext")
        g("s_waitcnt lgkmcnt(0)")
        g("s_barrier")
        g(f"v_and_b32 v{hP}, 3, v{T+1}")
        g(f"v_lshlrev_b32 v{hPa}, 8, v{hP}")
        g(f"v_add_u32 v{hPa}, {PROG}, v{hPa}")
        g(f"v_mov_b32 v{hOne}, 1")
        g(f"v_mov_b32 v{hOne2}, {W-1}")
        g(f"v_mov_b32 v{hOne3}, 4")
        g(f"v_lshlrev_b32 v{hR}, 2, v{T+1}")
        g(f"v_add_u32 v{hR}, {READY}, v{hR}")
        g(f"s_mov_b32 s{sSpin}, 0x40000")
        g.label("L_hnext")
        g(f"s_cmp_lt_u32 s{sX}, {W}")
        g("s_cbranch_scc1 L_hgo")
        g(f"s_cmp_gt_u32 s{sX}, {P1}")
        g("s_cbranch_scc1 L_hph2")
        g(f"s_waitcnt vmcnt({4*(W-1)})")
        for w in range(4): g(f"ds_add_u32 v{hR}, v{hOne} offset:{256*w}")
        g(f"s_cmp_lt_u32 s{sX}, {P1}")
        g("s_cbranch_scc1 L_hgo")
        g("s_waitcnt vmcnt(0)")
        for w in range(4): g(f"ds_add_u32 v{hR}, v{hOne2} offset:{256*w}")
        g("s_branch L_hchunk")
        g.label("L_hph2")
        g(f"s_and_b32 s{sTmp}, s{sX}, 3")
        g("s_cbranch_scc1 L_hgo")
        g("s_waitcnt vmcnt(0)")
        for w in range(4): g(f"ds_add_u32 v{hR}, v{hOne3} offset:{256*w}")
        g.label("L_hchunk")
        g(f"s_cmp_lt_u32 s{sX}, {NT}")
        g("s_cbranch_scc0 L_hdone")
        g(f"s_lshr_b32 s{sTmp}, s{sX}, 2")
        g(f"s_sub_u32 s{sTmp}, s{sTmp}, {R}")
        g(f"s_mul_i32 s{sTmp}, s{sTmp}, {U}")
        g.label("L_hpoll")
        g(f"ds_read_b32 v{hP}, v{hPa}")
        g("s_waitcnt lgkmcnt(0)")
        g("s_setprio 3")
        g(f"v_cmp_gt_u32 vcc, s{sTmp}, v{hP}")
        g("s_setprio 0")
        g("s_nop 0")
        g("s_cmp_eq_u64 vcc, 0")
        g("s_cbranch_scc1 L_hgo")
        g(f"s_sleep {SLP}")
        g(f"s_sub_u32 s{sSpin}, s{sSpin}, 1")
        g("s_cbranch_scc0 L_hpoll")
        g.label("L_hdone")
        g("s_waitcnt lgkmcnt(0)")
        g("s_endpgm")
    g("s_cmp_ge_u32 s2, 256")
    g("s_cbranch_scc1 L_end")
    g("s_load_dwordx4 s[4:7], s[0:1], 0")
    g("s_load_dwordx4 s[8:11], s[0:1], 16")
    if INSTR:
        g("s_memtime s[44:45]")
        g("s_memrealtime s[52:53]")
        g("s_load_dwordx2 s[56:57], s[0:1], 40")
    NPF = 0
    if PF:
        g("s_getpc_b64 s[42:43]")
        g(f"v_lshlrev_b32 v{T}, 4, v0")
        g(f"global_load_dwordx4 v[0+16:3+16], v{T}, s[42:43]")
        NPF = 1
        if PF > 1:
            g(f"v_add_u32 v{T+1}, 5120, v{T}")
            g(f"global_load_dwordx4 v[0+20:3+20], v{T+1}, s[42:43]")
            NPF = 2
    g(f"v_lshrrev_b32 v{T}, 6, v0")
    g(f"v_and_b32 v{T+1}, 63, v0")
    g(f"v_readfirstlane_b32 s{sWave}, v{T}")
    g(f"s_and_b32 s{sTmp}, s2, 7")
    g(f"s_lshr_b32 s{sTmp2}, s2, 5")
    g(f"s_lshl_b32 s{sTmp}, s{sTmp}, 3")
    g(f"s_add_u32 s{sTmp}, s{sTmp}, s{sTmp2}")
    g(f"s_lshl_b32 s{sTmp}, s{sTmp}, 17")
    g(f"v_and_b32 v{T}, 31, v{T+1}")
    g(f"v_lshrrev_b32 v{T+2}, 5, v{T+1}")
    g(f"v_lshlrev_b32 v{vQoff}, 6, v{T}")
    g(f"v_lshl_add_u32 v{vQoff}, v{T+2}, 4, v{vQoff}")
    g(f"s_cmp_eq_u32 s{sWave}, 4")
    g("s_cbranch_scc1 L_helper")
    g(f"s_bfe_u32 s{sTmp2}, s2, 0x20003")
    g(f"s_lshl_b32 s{sTmp2}, s{sTmp2}, 15")
    g(f"s_lshl_b32 s{sC}, s{sWave}, 13")
    g(f"s_add_u32 s{sTmp2}, s{sTmp2}, s{sC}")
    g(f"s_add_u32 s{sTmp2}, s{sTmp2}, s{sTmp}")
    g(f"s_mov_b32 s{sQ+2}, 8192")
    g(f"s_mov_b32 s{sQ+3}, 0x00020000")
    g("s_waitcnt lgkmcnt(0)")
    g(f"s_add_u32 s{sQ}, s4, s{sTmp2}")
    g(f"s_addc_u32 s{sQ+1}, s5, 0")
    def qload(js):
        for j in js:
            for h in range(2):
                off = j * 2048 + h * 32
                so = "0" if off < 4096 else f"s{sP}"
                g(f"buffer_load_dwordx4 {r(Q[j][h], 4)}, v{vQoff}, s[{sQ}:{sQ+3}], {so} offen offset:{off % 4096}")
    qload((0, 1))
    g("s_barrier")
    g("s_branch L_compute2")
    emit_helper()
    g.label("L_compute2")
    g(f"s_add_u32 s{sK}, s6, s{sTmp}")
    g(f"s_addc_u32 s{sK+1}, s7, 0")
    g(f"s_add_u32 s{sV}, s8, s{sTmp}")
    g(f"s_addc_u32 s{sV+1}, s9, 0")
    g(f"s_add_u32 s{sO}, s10, s{sTmp2}")
    g(f"s_addc_u32 s{sO+1}, s11, 0")
    for sr, n in ((sK, 131072), (sV, 131072), (sO, 8192)):
        g(f"s_mov_b32 s{sr+2}, {n}")
        g(f"s_mov_b32 s{sr+3}, 0x00020000")
    g(f"s_mov_b32 s{sSpin}, 0x40000")
    g(f"s_mov_b32 s{sP}, 4096")
    g(f"s_lshl_b32 s{sTmp}, s{sWave}, 8")
    g(f"s_add_u32 s{sTmp}, s{sTmp}, {READY}")
    g(f"v_lshlrev_b32 v{vL16}, 4, v{T+1}")
    g(f"v_lshlrev_b32 v{vSy}, 2, v{T+1}")
    g(f"v_add_u32 v{vSy}, s{sTmp}, v{vSy}")
    g(f"v_mov_b32 v{vA}, v{vL16}")
    g(f"v_and_b32 v{T}, 15, v{T+1}")
    g(f"v_lshrrev_b32 v{T}, 2, v{T}")
    g(f"v_lshl_add_u32 v{T}, v{T+2}, 3, v{T}")
    g(f"v_lshlrev_b32 v{T}, 6, v{T}")
    g(f"v_lshrrev_b32 v{T+3}, 4, v{T+1}")
    g(f"v_and_b32 v{T+3}, 1, v{T+3}")
    g(f"v_lshl_add_u32 v{T}, v{T+3}, 5, v{T}")
    g(f"v_and_b32 v{T+3}, 3, v{T+1}")
    g(f"v_lshl_add_u32 v{T}, v{T+3}, 3, v{T}")
    g(f"v_add_u32 v{vT0}, {KB}, v{T}")
    g(f"v_mov_b32 v{vT}, v{vT0}")
    g(f"v_lshrrev_b32 v{T+2}, 2, v{T+1}")
    g(f"v_and_b32 v{T+2}, 1, v{T+2}")
    g(f"v_cmp_eq_u32 vcc, 0, v{T+2}")
    g(f"v_mov_b32 v{T+3}, 0x3f803f80")
    g(f"v_mov_b32 v{IDX}, {U:#x}")
    g(f"v_cndmask_b32 v{ONES}, 0, v{T+3}, vcc")
    g(f"v_cndmask_b32 v{ONES+1}, 0, v{T+3}, vcc")
    g(f"v_cndmask_b32 v{ONES+2}, v{T+3}, 0, vcc")
    g(f"v_cndmask_b32 v{ONES+3}, v{T+3}, 0, vcc")
    for j in range(4):
        for i in range(0, 16, 2): g(f"v_pk_mov_b32 {r(O[j]+i,2)}, 0, 0")
        for i in range(0, 4, 2): g(f"v_pk_mov_b32 {r(Lr[j]+i,2)}, 0, 0")
    cbits = f32bits(1.4426950408889634 * 32 ** -0.5)
    g(f"s_mov_b32 s{sC}, 0x{cbits:08x}")
    g(f"s_mov_b32 s{sBase}, 0")
    g(f"s_mov_b32 s{sNeed}, 1")
    g(f"s_mov_b32 s{sBad}, 0")
    if INSTR == 1: g("s_memtime s[60:61]")
    g("s_waitcnt vmcnt(0)")
    if INSTR == 1: g("s_memtime s[62:63]")
    def qscale(js):
        for j in js:
            for h in range(2):
                for i in range(4):
                    x = Q[j][h] + i
                    t = T + 2 * (i % 2)
                    g(f"v_lshlrev_b32 v{t}, 16, v{x}")
                    g(f"v_and_b32 v{t+1}, 0xffff0000, v{x}")
                    g(f"v_mul_f32 v{t}, s{sC}, v{t}")
                    g(f"v_mul_f32 v{t+1}, s{sC}, v{t+1}")
                    g(f"v_cvt_pk_bf16_f32 v{x}, v{t}, v{t+1}")
    g(f"ds_read_b32 v{vFl}, v{vSy}")
    qload((2, 3))
    qscale((0, 1))
    slow = []
    def flagwait(name):
        g("s_waitcnt lgkmcnt(0)")
        g(f"v_readfirstlane_b32 s{sTmp}, v{vFl}")
        g("s_nop 0")
        g(f"s_cmp_ge_u32 s{sTmp}, s{sNeed}")
        g(f"s_cbranch_scc0 L_slow_{name}")
        g.label(f"L_ok_{name}")
        slow.append(name)
    flagwait("k0")
    if INSTR == 1:
        g("s_memtime s[64:65]")
        g("s_waitcnt lgkmcnt(0)")
    def kread1(kt, h):
        g(f"ds_read_b128 {r(K[kt%2][h],4)}, v{vA} offset:{(kt % CK) * 2048 + 1024*h}")
    def vread1(kt, i):
        g(f"ds_read_b64_tr_b16 {r(V[kt%2][i//2] + 2*(i%2),2)}, v{vT} offset:{(kt % CK) * 2048 + (0, 256, 1024, 1280)[i]}")
    def qk(dst, kbuf, j, cin):
        g(f"v_mfma_f32_32x32x16_bf16 {r(dst,16)}, {r(K[kbuf][0],4)}, {r(Q[j][0],4)}, {cin}")
        g(f"v_mfma_f32_32x32x16_bf16 {r(dst,16)}, {r(K[kbuf][1],4)}, {r(Q[j][1],4)}, {r(dst,16)}")
    def pairmax(sa, sb_, cb):
        m = T
        g(f"v_max3_f32 v{m}, v{sa}, v{sa+1}, v{sa+2}")
        g(f"v_max3_f32 v{m+1}, v{sa+3}, v{sa+4}, v{sa+5}")
        g(f"v_max3_f32 v{m+2}, v{sa+6}, v{sa+7}, v{sa+8}")
        g(f"v_max3_f32 v{m+3}, v{sa+9}, v{sa+10}, v{sa+11}")
        g(f"v_max3_f32 v{m}, v{m}, v{sa+12}, v{sa+13}")
        g(f"v_max3_f32 v{m+1}, v{m+1}, v{sa+14}, v{sa+15}")
        for i in range(8):
            g(f"v_max3_f32 v{m+i%4}, v{m+i%4}, v{sb_+2*i}, v{sb_+2*i+1}")
        g(f"v_max3_f32 v{m}, v{m}, v{m+2}, v{m+3}")
        g(f"v_max_f32 v{m}, v{m}, v{m+1}")
        finish_max(m, cb)
    def finish_max(m, cb):
        g(f"v_mov_b32 v{m+1}, v{m}")
        g("s_nop 1")
        g(f"v_permlane32_swap_b32 v{m}, v{m+1}")
        g("s_nop 1")
        g(f"v_max_f32 v{m}, v{m}, v{m+1}")
        g(f"v_sub_f32 v{m}, 0, v{m}")
        for i in range(16): g(f"v_mov_b32 v{CB[cb]+i}, v{m}")
    kread1(0, 0); kread1(0, 1)
    for i in range(4): vread1(0, i)
    g("s_waitcnt lgkmcnt(4)")
    qk(S[0], 0, 0, "0"); qk(S[1], 0, 1, "0")
    g(f"ds_read_b32 v{vFl}, v{vSy}")
    g(f"s_mov_b32 s{sNeed}, 2")
    g("s_nop 7")
    pairmax(S[0], S[1], 0)
    g("s_nop 1")
    qk(S[0], 0, 0, r(CB[0], 16))
    flagwait("k1")
    kread1(1, 0); kread1(1, 1)
    g(f"ds_read_b32 v{vFl}, v{vSy}")
    if INSTR:
        g("s_memtime s[46:47]")
        g("s_waitcnt lgkmcnt(0)")
    g("s_nop 7")
    g("s_nop 1")
    def pv(j, vb, half, sbuf):
        if ABL == 3:
            g(f"v_mfma_f32_32x32x16_bf16 {r(O[j],16)}, {r(V[vb][half],4)}, {r(Q[j][half], 4)}, {r(O[j],16)}"); g("s_nop 0"); g("s_nop 0"); return
        if ABL == 4:
            g("s_nop 2"); return
        g(f"v_smfmac_f32_32x32x32_bf16 {r(O[j],16)}, {r(V[vb][half],4)}, {r(sbuf + 8*half, 8)}, v{IDX}")
    def ls(j, half, sbuf):
        if ABL == 1:
            g("s_nop 2"); return
        g(f"v_smfmac_f32_16x16x64_bf16 {r(Lr[j],4)}, {r(ONES,4)}, {r(sbuf + 8*half, 8)}, v{IDX}")
    def region(name, order, prev_j, next_j, has_next, hooks=None, extra=None, skip_last2=False, lead2=False):
        NQ = len(order)
        NST = NQ * CK
        sched = {}
        def at(kt, jj, slot, fn): sched.setdefault((kt * NQ + jj, slot), []).append(fn)
        kj = 2 if NQ == 4 else 1
        for kt in range(CK):
            at(kt, 0, "pv2", lambda: g("s_waitcnt lgkmcnt(0)"))
            if kt + 1 < CK or has_next:
                if kt + 1 == CK: at(kt, 0, "qkb", lambda: g(f"v_add_u32 v{vT}, s{sBase}, v{vT0}"))
                if NQ == 4:
                    for i, (jj, sl) in enumerate(((0, "l2"), (0, "l1"), (1, "l2"), (1, "l1"))):
                        at(kt, jj, sl, lambda kt=kt, i=i: vread1(kt + 1, i))
                else:
                    for i, sl in enumerate(("l2", "l2", "l1", "l1")):
                        at(kt, 0, sl, lambda kt=kt, i=i: vread1(kt + 1, i))
            if kt + 2 < CK or has_next:
                if kt + 2 == CK: at(kt, kj, "qkb", lambda: g(f"v_add_u32 v{vA}, s{sBase}, v{vL16}"))
                at(kt, kj, "l2", lambda kt=kt: kread1(kt + 2, 0))
                at(kt, kj, "l1", lambda kt=kt: kread1(kt + 2, 1))
        if has_next and NQ == 4:
            at(CK - 3, 3, "l2", lambda: g(f"ds_read_b32 v{vFl}, v{vSy}"))
            at(CK - 2, 1, "qka", lambda: g(f"s_add_u32 s{sNeed}, s{sNeed}, 4"))
            at(CK - 2, 1, "qkb", lambda: g(f"s_add_u32 s{sBase}, s{sBase}, {CH}"))
            at(CK - 2, 1, "qkb", lambda: g(f"v_readfirstlane_b32 s{sTmp}, v{vFl}"))
            at(CK - 2, 1, "pv2", lambda: g(f"s_and_b32 s{sBase}, s{sBase}, {RING-1}"))
            def chk():
                g(f"s_cmp_ge_u32 s{sTmp}, s{sNeed}")
                g(f"s_cbranch_scc0 L_slow_{name}")
                g.label(f"L_ok_{name}")
                slow.append(name)
            at(CK - 2, 1, "pv1", chk)
            at(CK - 1, 3, "l2", lambda: g(f"ds_add_u32 v{vSy}, v{IDX} offset:1024"))
        if has_next and NQ == 2:
            for kt in range(CK):
                need = kt + 3 if kt < CK - 1 else 2 * CK
                if kt > 0: at(kt - 1, 1, "pv1", lambda: g(f"ds_read_b32 v{vFl}, v{vSy}"))
                def chk(kt=kt, need=need):
                    g(f"s_mov_b32 s{sNeed}, {need}")
                    g(f"v_readfirstlane_b32 s{sTmp}, v{vFl}")
                    if kt == CK - 2: g(f"s_mov_b32 s{sBase}, {CH}")
                    else: g("s_nop 0")
                    g(f"s_cmp_ge_u32 s{sTmp}, s{sNeed}")
                    g(f"s_cbranch_scc0 L_slow_{name}{kt}")
                    g.label(f"L_ok_{name}{kt}")
                    slow.append(f"{name}{kt}")
                at(kt, 0, "pv1", chk)
            at(CK - 1, 1, "pv1", lambda: g(f"ds_add_u32 v{vSy}, v{IDX} offset:1024"))
        if extra:
            for k, fns in extra.items(): sched.setdefault(k, []).extend(fns)
        for n in range(NST):
            kt, jj = n // NQ, n % NQ
            j = order[jj]
            sb = S[n % 4]; sprev = S[(n - 1) % 4]; snext = S[(n + 1) % 4]
            if n == 0: prev = None if prev_j is None else (CK - 1, prev_j)
            else: prev = ((n - 1) // NQ, order[(n - 1) % NQ])
            if n == NST - 1: nxt = None if next_j is None else (CK, next_j)
            else: nxt = ((n + 1) // NQ, order[(n + 1) % NQ])
            e = iter(range(16))
            def ex(k):
                for _ in range(k):
                    i = next(e); g(f"v_exp_f32 v{sb+i}, v{sb+i}" if ABL != 5 else "s_nop 1")
            def slot(nm):
                for fn in sched.get((n, nm), []): fn()
            g.c(f"---- {name} step {n}: kt={kt} j={j}")
            if n == 0 and lead2:
                g(f"v_exp_f32 v{sprev+14}, v{sprev+14}")
                g(f"v_exp_f32 v{sprev+15}, v{sprev+15}")
            if hooks and (n, "top") in hooks: hooks[(n, "top")]()
            if nxt and ABL == 2: g(f"v_mfma_f32_32x32x16_bf16 {r(snext,16)}, {r(K[nxt[0]%2][0],4)}, {r(Q[nxt[1]][0],4)}, 0")
            elif nxt: g(f"v_mfma_f32_32x32x16_bf16 {r(snext,16)}, {r(K[nxt[0]%2][0],4)}, {r(Q[nxt[1]][0],4)}, {r(CB[nxt[1]//2],16)}")
            slot("qka")
            ex(3)
            if nxt: g(f"v_mfma_f32_32x32x16_bf16 {r(snext,16)}, {r(K[nxt[0]%2][1],4)}, {r(Q[nxt[1]][1],4)}, {r(snext,16)}")
            slot("qkb")
            ex(3)
            if prev: pv(prev[1], prev[0] % 2, 1, sprev)
            slot("pv2")
            ex(3)
            if prev: ls(prev[1], 1, sprev)
            slot("l2")
            ex(2)
            pv(j, kt % 2, 0, sb)
            slot("pv1")
            ex(3)
            ls(j, 0, sb)
            slot("l1")
            if not (skip_last2 and n == NST - 1): ex(2)
            if hooks and (n, "end") in hooks: hooks[(n, "end")]()
    def q23():
        g.c("Q tiles 2,3: scale, stand-in max from chunk 1 tile 0")
        g("s_waitcnt vmcnt(0)")
        qscale((2, 3))
        g("s_nop 1")
        qk(S[0], 0, 2, "0"); qk(S[1], 0, 3, "0")
        g("s_nop 7")
        g("s_nop 1")
        pairmax(S[0], S[1], 1)
        g("s_nop 1")
    region("head", (0, 1), None, 2, True, hooks={(2 * CK - 1, "top"): q23},
           extra={(2 * CK - 1, "pv1"): [lambda: g(f"s_mov_b32 s{sIt}, 1")]}, skip_last2=True)
    if INSTR == 2: g("s_memtime s[60:61]")
    g.L.append(".p2align 6")
    g.label("L_loop")
    for u in range(UNR):
        ex_ = None
        if u == UNR - 1:
            ex_ = {(4 * CK - 1, "pv1"): [lambda: g(f"s_add_u32 s{sIt}, s{sIt}, {UNR}"), lambda: g(f"s_cmp_lt_u32 s{sIt}, {NCH}")]}
        region(f"body{u}", (2, 3, 0, 1), 1, 2, True, extra=ex_, skip_last2=True, lead2=True)
    if INSTR == 2:
        g("s_cbranch_scc0 L_exit")
        g(f"s_cmp_eq_u32 s{sIt}, {1 + UNR}")
        g("s_cbranch_scc0 L_loop")
        g("s_memtime s[62:63]")
        g("s_branch L_loop")
        g.label("L_exit")
        g("s_memtime s[64:65]")
    else:
        g("s_cbranch_scc1 L_loop")
    def check_store(js, bit, P):
        a, b = js
        X = P
        first = True
        for x, j in enumerate(js):
            for i in range(0, 16, 2):
                t = X + (i // 2) % 4
                if x == 0 and i < 8: g(f"v_maximum3_f32 v{t}, abs(v{O[j]+i}), abs(v{O[j]+i+1}), v{Lr[a]}")
                else: g(f"v_maximum3_f32 v{t}, abs(v{O[j]+i}), abs(v{O[j]+i+1}), v{t}")
        g(f"v_maximum3_f32 v{X}, v{X}, v{X+1}, v{X+2}")
        g(f"v_maximum3_f32 v{X+4}, v{Lr[a]}, v{Lr[b]}, v{Lr[b]}")
        g(f"v_minimum3_f32 v{X+5}, v{Lr[a]}, v{Lr[b]}, v{Lr[b]}")
        g(f"v_maximum3_f32 v{X}, v{X}, v{X+3}, v{X+3}")
        g(f"v_mov_b32 v{X+1}, 0x5f800000")
        g(f"v_mov_b32 v{X+2}, 0x{(127 - LO) << 23:08x}")
        g(f"v_mov_b32 v{X+3}, 0x7f800000")
        g(f"v_cmp_nlt_f32 s[38:39], v{X+4}, v{X+1}")
        g(f"v_cmp_nlt_f32 vcc, v{X}, v{X+3}")
        g(f"v_cmp_nge_f32 s[42:43], v{X+5}, v{X+2}")
        g("s_nop 1")
        g("s_or_b64 vcc, vcc, s[38:39]")
        g("s_or_b64 vcc, vcc, s[42:43]")
        g("s_cmp_lg_u64 vcc, 0")
        g(f"s_cselect_b32 s{sTmp}, {bit}, 0")
        g(f"s_or_b32 s{sBad}, s{sBad}, s{sTmp}")
        final_store(js, P, None)
    def final_store(js, P, soff):
        a, b = js
        g(f"v_rcp_f32 v{T}, v{Lr[a]}")
        g(f"v_rcp_f32 v{T+2}, v{Lr[b]}")
        g(f"v_mov_b32 v{T+1}, v{T}")
        g(f"v_mov_b32 v{T+3}, v{T+2}")
        for x, j in enumerate(js):
            for i in range(0, 16, 2): g(f"v_pk_mul_f32 {r(O[j]+i,2)}, {r(O[j]+i,2)}, {r(T+2*x,2)}")
            PP = P + 8 * x
            for gq in range(4):
                g(f"v_cvt_pk_bf16_f32 v{PP+2*gq}, v{O[j]+4*gq}, v{O[j]+4*gq+1}")
                g(f"v_cvt_pk_bf16_f32 v{PP+2*gq+1}, v{O[j]+4*gq+2}, v{O[j]+4*gq+3}")
            g("s_nop 1")
            for pr in range(2):
                bb = PP + 4 * pr
                g(f"v_permlane32_swap_b32 v{bb}, v{bb+2}")
                g(f"v_permlane32_swap_b32 v{bb+1}, v{bb+3}")
            g("s_nop 1")
            for pr in range(2):
                if soff is None:
                    off = j * 2048 + pr * 32
                    so = "0" if off < 4096 else f"s{sP}"
                    g(f"buffer_store_dwordx4 {r(PP+4*pr,4)}, v{vQoff}, s[{sO}:{sO+3}], {so} offen offset:{off % 4096}")
                else:
                    g(f"buffer_store_dwordx4 {r(PP+4*pr,4)}, v{vQoff}, s[{sO}:{sO+3}], s{soff} offen offset:{x*2048 + pr*32}")
    region("tail", (2, 3), 1, None, False, hooks={(1, "end"): lambda: check_store((0, 1), 1, Q[0][0])}, lead2=True)
    g("s_nop 1")
    pv(3, (CK - 1) % 2, 1, S[3]); ls(3, 1, S[3])
    if INSTR: g("s_memtime s[48:49]")
    g("s_nop 15")
    check_store((2, 3), 2, Q[2][0])
    g(f"s_cmp_lg_u32 s{sBad}, 0")
    if not ABL: g("s_cbranch_scc1 L_fallback")
    g.label("L_done")
    if INSTR:
        g("s_waitcnt vmcnt(0)")
        g("s_memtime s[50:51]")
        g("s_memrealtime s[54:55]")
        g("s_waitcnt lgkmcnt(0)")
        g("s_mov_b32 s68, s56")
        g("s_mov_b32 s69, s57")
        g("s_mov_b32 s70, 0x100000")
        g("s_mov_b32 s71, 0x00020000")
        g(f"s_lshl_b32 s{sTmp}, s2, 2")
        g(f"s_add_u32 s{sTmp}, s{sTmp}, s{sWave}")
        g(f"s_lshl_b32 s{sTmp}, s{sTmp}, 6")
        g("s_getreg_b32 s58, hwreg(HW_REG_XCC_ID)")
        g("s_getreg_b32 s59, hwreg(HW_REG_HW_ID)")
        for i, sr in enumerate((44, 46, 48, 50, 52, 54, 58, 59, 60, 60, 62, 64)):
            g(f"v_mov_b32 v{40+i}, s{sr}")
        g(f"v_mov_b32 v39, s{sTmp}")
        g("s_mov_b64 exec, 1")
        g("buffer_store_dwordx4 v[40:43], v39, s[68:71], 0 offen")
        g("buffer_store_dwordx4 v[44:47], v39, s[68:71], 0 offen offset:16")
        g("buffer_store_dwordx4 v[48:51], v39, s[68:71], 0 offen offset:32")
        g("s_waitcnt vmcnt(0)")
    g("s_endpgm")
    for name in slow:
        g.label(f"L_slow_{name}")
        g(f"s_sub_u32 s{sSpin}, s{sSpin}, 1")
        g("s_cbranch_scc1 L_end")
        g("s_sleep 1")
        g(f"ds_read_b32 v{vFl}, v{vSy}")
        g("s_waitcnt lgkmcnt(0)")
        g(f"v_readfirstlane_b32 s{sTmp}, v{vFl}")
        g("s_nop 0")
        g(f"s_cmp_ge_u32 s{sTmp}, s{sNeed}")
        g(f"s_cbranch_scc0 L_slow_{name}")
        g(f"s_branch L_ok_{name}")
    g.label("L_fallback")
    g("s_waitcnt vmcnt(0) lgkmcnt(0)")
    g(f"s_lshl_b32 s{sBase}, s{sWave}, 11")
    g(f"s_add_u32 s{sBase}, s{sBase}, {FBL}")
    g(f"s_sub_u32 s{sTmp}, s{sBase}, {KB}")
    g(f"v_add_u32 v{vT}, s{sTmp}, v{vT0}")
    g(f"s_mov_b32 s{sP}, 0")
    g.label("L_fb_pair")
    g(f"s_and_b32 s{sTmp}, s{sBad}, 1")
    g("s_cbranch_scc0 L_fb_next")
    for j in range(2):
        for h in range(2):
            g(f"buffer_load_dwordx4 {r(Q[j][h], 4)}, v{vQoff}, s[{sQ}:{sQ+3}], s{sP} offen offset:{j*2048 + h*32}")
    g("s_waitcnt vmcnt(0)")
    qscale((0, 1))
    M0r, M1r = S[2], S[2] + 4
    g(f"v_mov_b32 v{M0r}, 0xff800000")
    g(f"v_mov_b32 v{M1r}, 0xff800000")
    g(f"s_mov_b32 s{sGoff}, 0")
    g.label("L_fb_max")
    g(f"buffer_load_dwordx4 {r(K[0][0],4)}, v{vQoff}, s[{sK}:{sK+3}], s{sGoff} offen")
    g(f"buffer_load_dwordx4 {r(K[0][1],4)}, v{vQoff}, s[{sK}:{sK+3}], s{sGoff} offen offset:32")
    g("s_waitcnt vmcnt(0)")
    qk(S[0], 0, 0, "0"); qk(S[1], 0, 1, "0")
    g("s_nop 15")
    for j, m in ((0, M0r), (1, M1r)):
        for i in range(0, 16, 2):
            g(f"v_max3_f32 v{m}, v{m}, v{S[j]+i}, v{S[j]+i+1}")
    g(f"s_add_u32 s{sGoff}, s{sGoff}, 2048")
    g(f"s_cmp_lt_u32 s{sGoff}, 131072")
    g("s_cbranch_scc1 L_fb_max")
    for j, m in ((0, M0r), (1, M1r)):
        finish_max(m, j)
        for i in range(16): g(f"v_mov_b32 v{O[j]+i}, 0")
        for i in range(4): g(f"v_mov_b32 v{Lr[j]+i}, 0")
    g(f"s_mov_b32 s{sGoff}, 0")
    g.label("L_fb_loop")
    g(f"buffer_load_dwordx4 {r(K[0][0],4)}, v{vQoff}, s[{sK}:{sK+3}], s{sGoff} offen")
    g(f"buffer_load_dwordx4 {r(K[0][1],4)}, v{vQoff}, s[{sK}:{sK+3}], s{sGoff} offen offset:32")
    g(f"s_mov_b32 m0, s{sBase}")
    g("s_nop 0")
    g(f"buffer_load_dwordx4 v{vL16}, s[{sV}:{sV+3}], s{sGoff} offen lds")
    g(f"buffer_load_dwordx4 v{vL16}, s[{sV}:{sV+3}], s{sGoff} offen offset:1024 lds")
    g("s_waitcnt vmcnt(0)")
    for i in range(4): vread1(0, i)
    qk(S[0], 0, 0, r(CB[0], 16)); qk(S[1], 0, 1, r(CB[1], 16))
    g("s_nop 15")
    for j in range(2):
        for i in range(16): g(f"v_exp_f32 v{S[j]+i}, v{S[j]+i}")
    g("s_waitcnt lgkmcnt(0)")
    g("s_nop 1")
    for j in range(2):
        pv(j, 0, 0, S[j]); pv(j, 0, 1, S[j]); ls(j, 0, S[j]); ls(j, 1, S[j])
    g(f"s_add_u32 s{sGoff}, s{sGoff}, 2048")
    g(f"s_cmp_lt_u32 s{sGoff}, 131072")
    g("s_cbranch_scc1 L_fb_loop")
    g("s_nop 15")
    g("s_nop 3")
    final_store((0, 1), S[2], sP)
    g("s_waitcnt vmcnt(0)")
    g.label("L_fb_next")
    g(f"s_lshr_b32 s{sBad}, s{sBad}, 1")
    g(f"s_add_u32 s{sP}, s{sP}, 4096")
    g(f"s_cmp_lt_u32 s{sP}, 8192")
    g("s_cbranch_scc1 L_fb_pair")
    g("s_branch L_done")
    g.label("L_end")
    g("s_endpgm")
    hdr = open("cdna_kernels/" + NAME + ".s.ref").read().split("; Override launch")[0]
    out = hdr + f"""; Override launch geometry by editing the next line (default: block=256,
; grid=ceil(out_elems/256), lds=0). Harness parses it; keep it on one line.
; @launch grid=(256,1,1) block=(320,1,1) lds={LDS}
.amdgcn_target "amdgcn-amd-amdhsa--gfx950"
.text
.globl {NAME}_kernel
.p2align 8
.type {NAME}_kernel,@function
{NAME}_kernel:
{g.text()}
.section .rodata,"a"
.p2align 6
.amdhsa_kernel {NAME}_kernel
  .amdhsa_next_free_vgpr 256
  .amdhsa_next_free_sgpr {80 if INSTR else 48}
  .amdhsa_accum_offset 256
  .amdhsa_group_segment_fixed_size 0
  .amdhsa_kernarg_size 48
  .amdhsa_user_sgpr_count 2
  .amdhsa_user_sgpr_kernarg_segment_ptr 1
  .amdhsa_system_sgpr_workgroup_id_x 1
.end_amdhsa_kernel
"""
    return out

if __name__ == "__main__":
    out = sys.argv[1] if len(sys.argv) > 1 else f"cdna_kernels/{NAME}.s"
    kw = dict(a.split("=") for a in sys.argv[2:])
    kw = {k: int(v) for k, v in kw.items()}
    open(out, "w").write(gen(**kw))
```

```python
import sys, struct

NAME = "standalone__fused_io_aware_attn__prompt"
def f32bits(x): return struct.unpack("<I", struct.pack("<f", x))[0]

class Gen:
    def __init__(s): s.L = []
    def __call__(s, txt): s.L.append("    " + txt)
    def label(s, l): s.L.append(l + ":")
    def c(s, t): s.L.append("    ; " + t)
    def text(s): return "\n".join(s.L)

def gen(NS=8, R=4, INSTR=0, SLP=12, UNR=1, LO=64, ABL=0, PF=2, W=8, B0=2, ST=0, OT=0):
    STF = ['', ' sc1', ' sc0 sc1', ' nt', ' sc1 nt', ' sc0 sc1 nt'][ST]
    g = Gen()
    CK = 4
    D = 2
    KB = CK * 2048
    CH = 2 * KB
    NCH = 64 // CK
    NCHT = NCH + 1
    RING = NS * CH
    READY = RING
    PROG = RING + 1024
    FBL = RING + 2048
    LDS = RING + 2048 + 8192
    U = 0xdddd
    assert R >= D + 1 and R <= NS - 1 and (NCH - 1) % UNR == 0
    S = [0, 16, 32, 48]
    CB = [64, 80]
    O = [96, 112, 128, 144]
    Q = [[160 + 8 * j + 4 * h for h in range(2)] for j in range(4)]
    K = [[192 + 8 * b + 4 * h for h in range(2)] for b in range(2)]
    V = [[208 + 8 * b + 4 * h for h in range(2)] for b in range(2)]
    Lr = [224 + 4 * j for j in range(4)]
    ONES, IDX = 240, 244
    vA, vL16, vSy, vFl, vQoff, vT, vT0 = 245, 246, 247, 248, 249, 250, 251
    T = 252
    def r(b, n): return f"v[{b}:{b+n-1}]"
    sK, sV, sQ, sO = 12, 16, 20, 24
    sWave, sHead, sQB = 28, 29, 30
    sGoff, sBase, sIt, sTmp, sC = 31, 32, 33, 34, 35
    sTmp2, sNeed, sBad, sP, sSpin = 36, 37, 40, 41, 3
    def emit_helper():
        NT = NCHT * CK
        g.label("L_helper")
        hW, hZ, hPa, hP, hOne, hR, hOne2, hOne3 = 4, 8, 12, 13, 14, 15, 5, 6
        sC_, sX, sM, sG = 31, 32, 33, 35
        g(f"v_lshlrev_b32 v{vL16}, 4, v{T+1}")
        g(f"v_add_u32 v{vFl}, 32, v{vQoff}")
        for sr, n in ((sK, 131072), (sV, 131072)):
            g(f"s_mov_b32 s{sr+2}, {n}")
            g(f"s_mov_b32 s{sr+3}, 0x00020000")
        g(f"s_mov_b32 s{sX}, 0")
        for i in range(4): g(f"v_mov_b32 v{hZ+i}, 0")
        g(f"v_add_u32 v{hW}, {READY}, v{vL16}")
        g("s_waitcnt lgkmcnt(0)")
        g(f"ds_write_b128 v{hW}, {r(hZ,4)}")
        g(f"ds_write_b128 v{hW}, {r(hZ,4)} offset:1024")
        g(f"s_add_u32 s{sK}, s6, s{sTmp}")
        g(f"s_addc_u32 s{sK+1}, s7, 0")
        g(f"s_add_u32 s{sV}, s8, s{sTmp}")
        g(f"s_addc_u32 s{sV+1}, s9, 0")
        g.label("L_hgo")
        g(f"s_and_b32 s{sM}, s{sX}, {4*(NS-1)}")
        g(f"s_lshl_b32 s{sM}, s{sM}, {CH.bit_length()-1-2}")
        g(f"s_and_b32 s{sTmp}, s{sX}, 3")
        g(f"s_lshl_b32 s{sTmp}, s{sTmp}, 11")
        g(f"s_add_u32 s{sM}, s{sM}, s{sTmp}")
        g(f"s_mov_b32 m0, s{sM}")
        g(f"s_and_b32 s{sG}, s{sX}, 63")
        g(f"s_lshl_b32 s{sG}, s{sG}, 11")
        g(f"buffer_load_dwordx4 v{vQoff}, s[{sK}:{sK+3}], s{sG} offen lds")
        g(f"s_add_u32 s{sTmp}, s{sM}, 1024")
        g(f"s_mov_b32 m0, s{sTmp}")
        g(f"s_add_u32 s{sTmp}, s{sM}, {KB}")
        g(f"buffer_load_dwordx4 v{vFl}, s[{sK}:{sK+3}], s{sG} offen lds")
        g(f"s_mov_b32 m0, s{sTmp}")
        g(f"s_add_u32 s{sX}, s{sX}, 1")
        g(f"buffer_load_dwordx4 v{vL16}, s[{sV}:{sV+3}], s{sG} offen lds")
        g(f"buffer_load_dwordx4 v{vL16}, s[{sV}:{sV+3}], s{sG} offen offset:1024 lds")
        P1 = 4 * (R + 1)
        g(f"s_cmp_eq_u32 s{sX}, {B0}")
        g("s_cbranch_scc0 L_hnext")
        g("s_waitcnt lgkmcnt(0)")
        g("s_barrier")
        g(f"v_and_b32 v{hP}, 3, v{T+1}")
        g(f"v_lshlrev_b32 v{hPa}, 8, v{hP}")
        g(f"v_add_u32 v{hPa}, {PROG}, v{hPa}")
        g(f"v_mov_b32 v{hOne}, 1")
        g(f"v_mov_b32 v{hOne2}, {W-1}")
        g(f"v_mov_b32 v{hOne3}, 4")
        g(f"v_lshlrev_b32 v{hR}, 2, v{T+1}")
        g(f"v_add_u32 v{hR}, {READY}, v{hR}")
        g(f"s_mov_b32 s{sSpin}, 0x40000")
        g.label("L_hnext")
        g(f"s_cmp_lt_u32 s{sX}, {W}")
        g("s_cbranch_scc1 L_hgo")
        g(f"s_cmp_gt_u32 s{sX}, {P1}")
        g("s_cbranch_scc1 L_hph2")
        g(f"s_waitcnt vmcnt({4*(W-1)})")
        for w in range(4): g(f"ds_add_u32 v{hR}, v{hOne} offset:{256*w}")
        g(f"s_cmp_lt_u32 s{sX}, {P1}")
        g("s_cbranch_scc1 L_hgo")
        g("s_waitcnt vmcnt(0)")
        for w in range(4): g(f"ds_add_u32 v{hR}, v{hOne2} offset:{256*w}")
        g("s_branch L_hchunk")
        g.label("L_hph2")
        g(f"s_and_b32 s{sTmp}, s{sX}, 3")
        g("s_cbranch_scc1 L_hgo")
        g("s_waitcnt vmcnt(0)")
        for w in range(4): g(f"ds_add_u32 v{hR}, v{hOne3} offset:{256*w}")
        g.label("L_hchunk")
        g(f"s_cmp_lt_u32 s{sX}, {NT}")
        g("s_cbranch_scc0 L_hdone")
        g(f"s_lshr_b32 s{sTmp}, s{sX}, 2")
        g(f"s_sub_u32 s{sTmp}, s{sTmp}, {R}")
        g(f"s_mul_i32 s{sTmp}, s{sTmp}, {U}")
        g.label("L_hpoll")
        g(f"ds_read_b32 v{hP}, v{hPa}")
        g("s_waitcnt lgkmcnt(0)")
        g("s_setprio 3")
        g(f"v_cmp_gt_u32 vcc, s{sTmp}, v{hP}")
        g("s_setprio 0")
        g("s_nop 0")
        g("s_cmp_eq_u64 vcc, 0")
        g("s_cbranch_scc1 L_hgo")
        g(f"s_sleep {SLP}")
        g(f"s_sub_u32 s{sSpin}, s{sSpin}, 1")
        g("s_cbranch_scc0 L_hpoll")
        g.label("L_hdone")
        g("s_waitcnt lgkmcnt(0)")
        g("s_endpgm")
    g("s_cmp_ge_u32 s2, 256")
    g("s_cbranch_scc1 L_end")
    g("s_load_dwordx4 s[4:7], s[0:1], 0")
    g("s_load_dwordx4 s[8:11], s[0:1], 16")
    if INSTR:
        g("s_memtime s[44:45]")
        g("s_memrealtime s[52:53]")
        g("s_load_dwordx2 s[56:57], s[0:1], 40")
    NPF = 0
    if PF:
        g("s_getpc_b64 s[42:43]")
        g(f"v_lshlrev_b32 v{T}, 4, v0")
        g(f"global_load_dwordx4 v[0+16:3+16], v{T}, s[42:43]")
        NPF = 1
        if PF > 1:
            g(f"v_add_u32 v{T+1}, 5120, v{T}")
            g(f"global_load_dwordx4 v[0+20:3+20], v{T+1}, s[42:43]")
            NPF = 2
    g(f"v_lshrrev_b32 v{T}, 6, v0")
    g(f"v_and_b32 v{T+1}, 63, v0")
    g(f"v_readfirstlane_b32 s{sWave}, v{T}")
    g(f"s_and_b32 s{sTmp}, s2, 7")
    g(f"s_lshr_b32 s{sTmp2}, s2, 5")
    g(f"s_lshl_b32 s{sTmp}, s{sTmp}, 3")
    g(f"s_add_u32 s{sTmp}, s{sTmp}, s{sTmp2}")
    g(f"s_lshl_b32 s{sTmp}, s{sTmp}, 17")
    g(f"v_and_b32 v{T}, 31, v{T+1}")
    g(f"v_lshrrev_b32 v{T+2}, 5, v{T+1}")
    g(f"v_lshlrev_b32 v{vQoff}, 6, v{T}")
    g(f"v_lshl_add_u32 v{vQoff}, v{T+2}, 4, v{vQoff}")
    g(f"s_cmp_eq_u32 s{sWave}, 4")
    g("s_cbranch_scc1 L_helper")
    g(f"s_bfe_u32 s{sTmp2}, s2, 0x20003")
    g(f"s_lshl_b32 s{sTmp2}, s{sTmp2}, 15")
    g(f"s_lshl_b32 s{sC}, s{sWave}, 13")
    g(f"s_add_u32 s{sTmp2}, s{sTmp2}, s{sC}")
    g(f"s_add_u32 s{sTmp2}, s{sTmp2}, s{sTmp}")
    g(f"s_mov_b32 s{sQ+2}, 8192")
    g(f"s_mov_b32 s{sQ+3}, 0x00020000")
    g("s_waitcnt lgkmcnt(0)")
    g(f"s_add_u32 s{sQ}, s4, s{sTmp2}")
    g(f"s_addc_u32 s{sQ+1}, s5, 0")
    def qload(js):
        for j in js:
            for h in range(2):
                off = j * 2048 + h * 32
                so = "0" if off < 4096 else f"s{sP}"
                g(f"buffer_load_dwordx4 {r(Q[j][h], 4)}, v{vQoff}, s[{sQ}:{sQ+3}], {so} offen offset:{off % 4096}")
    qload((0, 1))
    g("s_barrier")
    g("s_branch L_compute2")
    emit_helper()
    g.label("L_compute2")
    g(f"s_add_u32 s{sK}, s6, s{sTmp}")
    g(f"s_addc_u32 s{sK+1}, s7, 0")
    g(f"s_add_u32 s{sV}, s8, s{sTmp}")
    g(f"s_addc_u32 s{sV+1}, s9, 0")
    g(f"s_add_u32 s{sO}, s10, s{sTmp2}")
    g(f"s_addc_u32 s{sO+1}, s11, 0")
    for sr, n in ((sK, 131072), (sV, 131072), (sO, 8192)):
        g(f"s_mov_b32 s{sr+2}, {n}")
        g(f"s_mov_b32 s{sr+3}, 0x00020000")
    g(f"s_mov_b32 s{sSpin}, 0x40000")
    g(f"s_mov_b32 s{sP}, 4096")
    g(f"s_lshl_b32 s{sTmp}, s{sWave}, 8")
    g(f"s_add_u32 s{sTmp}, s{sTmp}, {READY}")
    g(f"v_lshlrev_b32 v{vL16}, 4, v{T+1}")
    g(f"v_lshlrev_b32 v{vSy}, 2, v{T+1}")
    g(f"v_add_u32 v{vSy}, s{sTmp}, v{vSy}")
    g(f"v_mov_b32 v{vA}, v{vL16}")
    g(f"v_and_b32 v{T}, 15, v{T+1}")
    g(f"v_lshrrev_b32 v{T}, 2, v{T}")
    g(f"v_lshl_add_u32 v{T}, v{T+2}, 3, v{T}")
    g(f"v_lshlrev_b32 v{T}, 6, v{T}")
    g(f"v_lshrrev_b32 v{T+3}, 4, v{T+1}")
    g(f"v_and_b32 v{T+3}, 1, v{T+3}")
    g(f"v_lshl_add_u32 v{T}, v{T+3}, 5, v{T}")
    g(f"v_and_b32 v{T+3}, 3, v{T+1}")
    g(f"v_lshl_add_u32 v{T}, v{T+3}, 3, v{T}")
    g(f"v_add_u32 v{vT0}, {KB}, v{T}")
    g(f"v_mov_b32 v{vT}, v{vT0}")
    g(f"v_lshrrev_b32 v{T+2}, 2, v{T+1}")
    g(f"v_and_b32 v{T+2}, 1, v{T+2}")
    g(f"v_cmp_eq_u32 vcc, 0, v{T+2}")
    g(f"v_mov_b32 v{T+3}, 0x3f803f80")
    g(f"v_mov_b32 v{IDX}, {U:#x}")
    g(f"v_cndmask_b32 v{ONES}, 0, v{T+3}, vcc")
    g(f"v_cndmask_b32 v{ONES+1}, 0, v{T+3}, vcc")
    g(f"v_cndmask_b32 v{ONES+2}, v{T+3}, 0, vcc")
    g(f"v_cndmask_b32 v{ONES+3}, v{T+3}, 0, vcc")
    for j in range(4):
        for i in range(0, 16, 2): g(f"v_pk_mov_b32 {r(O[j]+i,2)}, 0, 0")
        for i in range(0, 4, 2): g(f"v_pk_mov_b32 {r(Lr[j]+i,2)}, 0, 0")
    cbits = f32bits(1.4426950408889634 * 32 ** -0.5)
    g(f"s_mov_b32 s{sC}, 0x{cbits:08x}")
    g(f"s_mov_b32 s{sBase}, 0")
    g(f"s_mov_b32 s{sNeed}, 1")
    g(f"s_mov_b32 s{sBad}, 0")
    if INSTR == 1: g("s_memtime s[60:61]")
    g("s_waitcnt vmcnt(0)")
    if INSTR == 1: g("s_memtime s[62:63]")
    def qscale(js):
        for j in js:
            for h in range(2):
                for i in range(4):
                    x = Q[j][h] + i
                    t = T + 2 * (i % 2)
                    g(f"v_lshlrev_b32 v{t}, 16, v{x}")
                    g(f"v_and_b32 v{t+1}, 0xffff0000, v{x}")
                    g(f"v_mul_f32 v{t}, s{sC}, v{t}")
                    g(f"v_mul_f32 v{t+1}, s{sC}, v{t+1}")
                    g(f"v_cvt_pk_bf16_f32 v{x}, v{t}, v{t+1}")
    g(f"ds_read_b32 v{vFl}, v{vSy}")
    qload((2, 3))
    if OT: g(f"buffer_load_dword v{S[3]}, v{vQoff}, s[{sO}:{sO+3}], 0 offen")
    qscale((0, 1))
    slow = []
    def flagwait(name):
        g("s_waitcnt lgkmcnt(0)")
        g(f"v_readfirstlane_b32 s{sTmp}, v{vFl}")
        g("s_nop 0")
        g(f"s_cmp_ge_u32 s{sTmp}, s{sNeed}")
        g(f"s_cbranch_scc0 L_slow_{name}")
        g.label(f"L_ok_{name}")
        slow.append(name)
    flagwait("k0")
    if INSTR == 1:
        g("s_memtime s[64:65]")
        g("s_waitcnt lgkmcnt(0)")
    def kread1(kt, h):
        g(f"ds_read_b128 {r(K[kt%2][h],4)}, v{vA} offset:{(kt % CK) * 2048 + 1024*h}")
    def vread1(kt, i):
        g(f"ds_read_b64_tr_b16 {r(V[kt%2][i//2] + 2*(i%2),2)}, v{vT} offset:{(kt % CK) * 2048 + (0, 256, 1024, 1280)[i]}")
    def qk(dst, kbuf, j, cin):
        g(f"v_mfma_f32_32x32x16_bf16 {r(dst,16)}, {r(K[kbuf][0],4)}, {r(Q[j][0],4)}, {cin}")
        g(f"v_mfma_f32_32x32x16_bf16 {r(dst,16)}, {r(K[kbuf][1],4)}, {r(Q[j][1],4)}, {r(dst,16)}")
    def pairmax(sa, sb_, cb):
        m = T
        g(f"v_max3_f32 v{m}, v{sa}, v{sa+1}, v{sa+2}")
        g(f"v_max3_f32 v{m+1}, v{sa+3}, v{sa+4}, v{sa+5}")
        g(f"v_max3_f32 v{m+2}, v{sa+6}, v{sa+7}, v{sa+8}")
        g(f"v_max3_f32 v{m+3}, v{sa+9}, v{sa+10}, v{sa+11}")
        g(f"v_max3_f32 v{m}, v{m}, v{sa+12}, v{sa+13}")
        g(f"v_max3_f32 v{m+1}, v{m+1}, v{sa+14}, v{sa+15}")
        for i in range(8):
            g(f"v_max3_f32 v{m+i%4}, v{m+i%4}, v{sb_+2*i}, v{sb_+2*i+1}")
        g(f"v_max3_f32 v{m}, v{m}, v{m+2}, v{m+3}")
        g(f"v_max_f32 v{m}, v{m}, v{m+1}")
        finish_max(m, cb)
    def finish_max(m, cb):
        g(f"v_mov_b32 v{m+1}, v{m}")
        g("s_nop 1")
        g(f"v_permlane32_swap_b32 v{m}, v{m+1}")
        g("s_nop 1")
        g(f"v_max_f32 v{m}, v{m}, v{m+1}")
        g(f"v_sub_f32 v{m}, 0, v{m}")
        for i in range(16): g(f"v_mov_b32 v{CB[cb]+i}, v{m}")
    kread1(0, 0); kread1(0, 1)
    for i in range(4): vread1(0, i)
    g("s_waitcnt lgkmcnt(4)")
    qk(S[0], 0, 0, "0"); qk(S[1], 0, 1, "0")
    g(f"ds_read_b32 v{vFl}, v{vSy}")
    g(f"s_mov_b32 s{sNeed}, 2")
    g("s_nop 7")
    pairmax(S[0], S[1], 0)
    g("s_nop 1")
    qk(S[0], 0, 0, r(CB[0], 16))
    flagwait("k1")
    kread1(1, 0); kread1(1, 1)
    g(f"ds_read_b32 v{vFl}, v{vSy}")
    if INSTR:
        g("s_memtime s[46:47]")
        g("s_waitcnt lgkmcnt(0)")
    g("s_nop 7")
    g("s_nop 1")
    def pv(j, vb, half, sbuf):
        if ABL == 3:
            g(f"v_mfma_f32_32x32x16_bf16 {r(O[j],16)}, {r(V[vb][half],4)}, {r(Q[j][half], 4)}, {r(O[j],16)}"); g("s_nop 0"); g("s_nop 0"); return
        if ABL == 4:
            g("s_nop 2"); return
        g(f"v_smfmac_f32_32x32x32_bf16 {r(O[j],16)}, {r(V[vb][half],4)}, {r(sbuf + 8*half, 8)}, v{IDX}")
    def ls(j, half, sbuf):
        if ABL == 1:
            g("s_nop 2"); return
        g(f"v_smfmac_f32_16x16x64_bf16 {r(Lr[j],4)}, {r(ONES,4)}, {r(sbuf + 8*half, 8)}, v{IDX}")
    def region(name, order, prev_j, next_j, has_next, hooks=None, extra=None, skip_last2=False, lead2=False):
        NQ = len(order)
        NST = NQ * CK
        sched = {}
        def at(kt, jj, slot, fn): sched.setdefault((kt * NQ + jj, slot), []).append(fn)
        kj = 2 if NQ == 4 else 1
        for kt in range(CK):
            at(kt, 0, "pv2", lambda: g("s_waitcnt lgkmcnt(0)"))
            if kt + 1 < CK or has_next:
                if kt + 1 == CK: at(kt, 0, "qkb", lambda: g(f"v_add_u32 v{vT}, s{sBase}, v{vT0}"))
                if NQ == 4:
                    for i, (jj, sl) in enumerate(((0, "l2"), (0, "l1"), (1, "l2"), (1, "l1"))):
                        at(kt, jj, sl, lambda kt=kt, i=i: vread1(kt + 1, i))
                else:
                    for i, sl in enumerate(("l2", "l2", "l1", "l1")):
                        at(kt, 0, sl, lambda kt=kt, i=i: vread1(kt + 1, i))
            if kt + 2 < CK or has_next:
                if kt + 2 == CK: at(kt, kj, "qkb", lambda: g(f"v_add_u32 v{vA}, s{sBase}, v{vL16}"))
                at(kt, kj, "l2", lambda kt=kt: kread1(kt + 2, 0))
                at(kt, kj, "l1", lambda kt=kt: kread1(kt + 2, 1))
        if has_next and NQ == 4:
            at(CK - 3, 3, "l2", lambda: g(f"ds_read_b32 v{vFl}, v{vSy}"))
            at(CK - 2, 1, "qka", lambda: g(f"s_add_u32 s{sNeed}, s{sNeed}, 4"))
            at(CK - 2, 1, "qkb", lambda: g(f"s_add_u32 s{sBase}, s{sBase}, {CH}"))
            at(CK - 2, 1, "qkb", lambda: g(f"v_readfirstlane_b32 s{sTmp}, v{vFl}"))
            at(CK - 2, 1, "pv2", lambda: g(f"s_and_b32 s{sBase}, s{sBase}, {RING-1}"))
            def chk():
                g(f"s_cmp_ge_u32 s{sTmp}, s{sNeed}")
                g(f"s_cbranch_scc0 L_slow_{name}")
                g.label(f"L_ok_{name}")
                slow.append(name)
            at(CK - 2, 1, "pv1", chk)
            at(CK - 1, 3, "l2", lambda: g(f"ds_add_u32 v{vSy}, v{IDX} offset:1024"))
        if has_next and NQ == 2:
            for kt in range(CK):
                need = kt + 3 if kt < CK - 1 else 2 * CK
                if kt > 0: at(kt - 1, 1, "pv1", lambda: g(f"ds_read_b32 v{vFl}, v{vSy}"))
                def chk(kt=kt, need=need):
                    g(f"s_mov_b32 s{sNeed}, {need}")
                    g(f"v_readfirstlane_b32 s{sTmp}, v{vFl}")
                    if kt == CK - 2: g(f"s_mov_b32 s{sBase}, {CH}")
                    else: g("s_nop 0")
                    g(f"s_cmp_ge_u32 s{sTmp}, s{sNeed}")
                    g(f"s_cbranch_scc0 L_slow_{name}{kt}")
                    g.label(f"L_ok_{name}{kt}")
                    slow.append(f"{name}{kt}")
                at(kt, 0, "pv1", chk)
            at(CK - 1, 1, "pv1", lambda: g(f"ds_add_u32 v{vSy}, v{IDX} offset:1024"))
        if extra:
            for k, fns in extra.items(): sched.setdefault(k, []).extend(fns)
        for n in range(NST):
            kt, jj = n // NQ, n % NQ
            j = order[jj]
            sb = S[n % 4]; sprev = S[(n - 1) % 4]; snext = S[(n + 1) % 4]
            if n == 0: prev = None if prev_j is None else (CK - 1, prev_j)
            else: prev = ((n - 1) // NQ, order[(n - 1) % NQ])
            if n == NST - 1: nxt = None if next_j is None else (CK, next_j)
            else: nxt = ((n + 1) // NQ, order[(n + 1) % NQ])
            e = iter(range(16))
            def ex(k):
                for _ in range(k):
                    i = next(e); g(f"v_exp_f32 v{sb+i}, v{sb+i}" if ABL != 5 else "s_nop 1")
            def slot(nm):
                for fn in sched.get((n, nm), []): fn()
            g.c(f"---- {name} step {n}: kt={kt} j={j}")
            if n == 0 and lead2:
                g(f"v_exp_f32 v{sprev+14}, v{sprev+14}")
                g(f"v_exp_f32 v{sprev+15}, v{sprev+15}")
            if hooks and (n, "top") in hooks: hooks[(n, "top")]()
            if nxt and ABL == 2: g(f"v_mfma_f32_32x32x16_bf16 {r(snext,16)}, {r(K[nxt[0]%2][0],4)}, {r(Q[nxt[1]][0],4)}, 0")
            elif nxt: g(f"v_mfma_f32_32x32x16_bf16 {r(snext,16)}, {r(K[nxt[0]%2][0],4)}, {r(Q[nxt[1]][0],4)}, {r(CB[nxt[1]//2],16)}")
            slot("qka")
            ex(3)
            if nxt: g(f"v_mfma_f32_32x32x16_bf16 {r(snext,16)}, {r(K[nxt[0]%2][1],4)}, {r(Q[nxt[1]][1],4)}, {r(snext,16)}")
            slot("qkb")
            ex(3)
            if prev: pv(prev[1], prev[0] % 2, 1, sprev)
            slot("pv2")
            ex(3)
            if prev: ls(prev[1], 1, sprev)
            slot("l2")
            ex(2)
            pv(j, kt % 2, 0, sb)
            slot("pv1")
            ex(3)
            ls(j, 0, sb)
            slot("l1")
            if not (skip_last2 and n == NST - 1): ex(2)
            if hooks and (n, "end") in hooks: hooks[(n, "end")]()
    def q23():
        g.c("Q tiles 2,3: scale, stand-in max from chunk 1 tile 0")
        g("s_waitcnt vmcnt(0)")
        qscale((2, 3))
        g("s_nop 1")
        qk(S[0], 0, 2, "0"); qk(S[1], 0, 3, "0")
        g("s_nop 7")
        g("s_nop 1")
        pairmax(S[0], S[1], 1)
        g("s_nop 1")
    region("head", (0, 1), None, 2, True, hooks={(2 * CK - 1, "top"): q23},
           extra={(2 * CK - 1, "pv1"): [lambda: g(f"s_mov_b32 s{sIt}, 1")]}, skip_last2=True)
    if INSTR == 2: g("s_memtime s[60:61]")
    g.L.append(".p2align 6")
    g.label("L_loop")
    for u in range(UNR):
        ex_ = None
        if u == UNR - 1:
            ex_ = {(4 * CK - 1, "pv1"): [lambda: g(f"s_add_u32 s{sIt}, s{sIt}, {UNR}"), lambda: g(f"s_cmp_lt_u32 s{sIt}, {NCH}")]}
        region(f"body{u}", (2, 3, 0, 1), 1, 2, True, extra=ex_, skip_last2=True, lead2=True)
    if INSTR == 2:
        g("s_cbranch_scc0 L_exit")
        g(f"s_cmp_eq_u32 s{sIt}, {1 + UNR}")
        g("s_cbranch_scc0 L_loop")
        g("s_memtime s[62:63]")
        g("s_branch L_loop")
        g.label("L_exit")
        g("s_memtime s[64:65]")
    else:
        g("s_cbranch_scc1 L_loop")
    def check_store(js, bit, P):
        a, b = js
        X = P
        first = True
        for x, j in enumerate(js):
            for i in range(0, 16, 2):
                t = X + (i // 2) % 4
                if x == 0 and i < 8: g(f"v_maximum3_f32 v{t}, abs(v{O[j]+i}), abs(v{O[j]+i+1}), v{Lr[a]}")
                else: g(f"v_maximum3_f32 v{t}, abs(v{O[j]+i}), abs(v{O[j]+i+1}), v{t}")
        g(f"v_maximum3_f32 v{X}, v{X}, v{X+1}, v{X+2}")
        g(f"v_maximum3_f32 v{X+4}, v{Lr[a]}, v{Lr[b]}, v{Lr[b]}")
        g(f"v_minimum3_f32 v{X+5}, v{Lr[a]}, v{Lr[b]}, v{Lr[b]}")
        g(f"v_maximum3_f32 v{X}, v{X}, v{X+3}, v{X+3}")
        g(f"v_mov_b32 v{X+1}, 0x5f800000")
        g(f"v_mov_b32 v{X+2}, 0x{(127 - LO) << 23:08x}")
        g(f"v_mov_b32 v{X+3}, 0x7f800000")
        g(f"v_cmp_nlt_f32 s[38:39], v{X+4}, v{X+1}")
        g(f"v_cmp_nlt_f32 vcc, v{X}, v{X+3}")
        g(f"v_cmp_nge_f32 s[42:43], v{X+5}, v{X+2}")
        g("s_nop 1")
        g("s_or_b64 vcc, vcc, s[38:39]")
        g("s_or_b64 vcc, vcc, s[42:43]")
        g("s_cmp_lg_u64 vcc, 0")
        g(f"s_cselect_b32 s{sTmp}, {bit}, 0")
        g(f"s_or_b32 s{sBad}, s{sBad}, s{sTmp}")
        final_store(js, P, None)
    def final_store(js, P, soff):
        a, b = js
        g(f"v_rcp_f32 v{T}, v{Lr[a]}")
        g(f"v_rcp_f32 v{T+2}, v{Lr[b]}")
        g(f"v_mov_b32 v{T+1}, v{T}")
        g(f"v_mov_b32 v{T+3}, v{T+2}")
        for x, j in enumerate(js):
            for i in range(0, 16, 2): g(f"v_pk_mul_f32 {r(O[j]+i,2)}, {r(O[j]+i,2)}, {r(T+2*x,2)}")
            PP = P + 8 * x
            for gq in range(4):
                g(f"v_cvt_pk_bf16_f32 v{PP+2*gq}, v{O[j]+4*gq}, v{O[j]+4*gq+1}")
                g(f"v_cvt_pk_bf16_f32 v{PP+2*gq+1}, v{O[j]+4*gq+2}, v{O[j]+4*gq+3}")
            g("s_nop 1")
            for pr in range(2):
                bb = PP + 4 * pr
                g(f"v_permlane32_swap_b32 v{bb}, v{bb+2}")
                g(f"v_permlane32_swap_b32 v{bb+1}, v{bb+3}")
            g("s_nop 1")
            for pr in range(2):
                if soff is None:
                    off = j * 2048 + pr * 32
                    so = "0" if off < 4096 else f"s{sP}"
                    g(f"buffer_store_dwordx4 {r(PP+4*pr,4)}, v{vQoff}, s[{sO}:{sO+3}], {so} offen offset:{off % 4096}{STF}")
                else:
                    g(f"buffer_store_dwordx4 {r(PP+4*pr,4)}, v{vQoff}, s[{sO}:{sO+3}], s{soff} offen offset:{x*2048 + pr*32}")
    region("tail", (2, 3), 1, None, False, hooks={(1, "end"): lambda: check_store((0, 1), 1, Q[0][0])}, lead2=True)
    g("s_nop 1")
    pv(3, (CK - 1) % 2, 1, S[3]); ls(3, 1, S[3])
    if INSTR: g("s_memtime s[48:49]")
    g("s_nop 15")
    check_store((2, 3), 2, Q[2][0])
    g(f"s_cmp_lg_u32 s{sBad}, 0")
    if not ABL: g("s_cbranch_scc1 L_fallback")
    g.label("L_done")
    if INSTR:
        g("s_waitcnt vmcnt(0)")
        g("s_memtime s[50:51]")
        g("s_memrealtime s[54:55]")
        g("s_waitcnt lgkmcnt(0)")
        g("s_mov_b32 s68, s56")
        g("s_mov_b32 s69, s57")
        g("s_mov_b32 s70, 0x100000")
        g("s_mov_b32 s71, 0x00020000")
        g(f"s_lshl_b32 s{sTmp}, s2, 2")
        g(f"s_add_u32 s{sTmp}, s{sTmp}, s{sWave}")
        g(f"s_lshl_b32 s{sTmp}, s{sTmp}, 6")
        g("s_getreg_b32 s58, hwreg(HW_REG_XCC_ID)")
        g("s_getreg_b32 s59, hwreg(HW_REG_HW_ID)")
        for i, sr in enumerate((44, 46, 48, 50, 52, 54, 58, 59, 60, 60, 62, 64)):
            g(f"v_mov_b32 v{40+i}, s{sr}")
        g(f"v_mov_b32 v39, s{sTmp}")
        g("s_mov_b64 exec, 1")
        g("buffer_store_dwordx4 v[40:43], v39, s[68:71], 0 offen")
        g("buffer_store_dwordx4 v[44:47], v39, s[68:71], 0 offen offset:16")
        g("buffer_store_dwordx4 v[48:51], v39, s[68:71], 0 offen offset:32")
        g("s_waitcnt vmcnt(0)")
    g("s_endpgm")
    for name in slow:
        g.label(f"L_slow_{name}")
        g(f"s_sub_u32 s{sSpin}, s{sSpin}, 1")
        g("s_cbranch_scc1 L_end")
        g("s_sleep 1")
        g(f"ds_read_b32 v{vFl}, v{vSy}")
        g("s_waitcnt lgkmcnt(0)")
        g(f"v_readfirstlane_b32 s{sTmp}, v{vFl}")
        g("s_nop 0")
        g(f"s_cmp_ge_u32 s{sTmp}, s{sNeed}")
        g(f"s_cbranch_scc0 L_slow_{name}")
        g(f"s_branch L_ok_{name}")
    g.label("L_fallback")
    g("s_waitcnt vmcnt(0) lgkmcnt(0)")
    g(f"s_lshl_b32 s{sBase}, s{sWave}, 11")
    g(f"s_add_u32 s{sBase}, s{sBase}, {FBL}")
    g(f"s_sub_u32 s{sTmp}, s{sBase}, {KB}")
    g(f"v_add_u32 v{vT}, s{sTmp}, v{vT0}")
    g(f"s_mov_b32 s{sP}, 0")
    g.label("L_fb_pair")
    g(f"s_and_b32 s{sTmp}, s{sBad}, 1")
    g("s_cbranch_scc0 L_fb_next")
    for j in range(2):
        for h in range(2):
            g(f"buffer_load_dwordx4 {r(Q[j][h], 4)}, v{vQoff}, s[{sQ}:{sQ+3}], s{sP} offen offset:{j*2048 + h*32}")
    g("s_waitcnt vmcnt(0)")
    qscale((0, 1))
    M0r, M1r = S[2], S[2] + 4
    g(f"v_mov_b32 v{M0r}, 0xff800000")
    g(f"v_mov_b32 v{M1r}, 0xff800000")
    g(f"s_mov_b32 s{sGoff}, 0")
    g.label("L_fb_max")
    g(f"buffer_load_dwordx4 {r(K[0][0],4)}, v{vQoff}, s[{sK}:{sK+3}], s{sGoff} offen")
    g(f"buffer_load_dwordx4 {r(K[0][1],4)}, v{vQoff}, s[{sK}:{sK+3}], s{sGoff} offen offset:32")
    g("s_waitcnt vmcnt(0)")
    qk(S[0], 0, 0, "0"); qk(S[1], 0, 1, "0")
    g("s_nop 15")
    for j, m in ((0, M0r), (1, M1r)):
        for i in range(0, 16, 2):
            g(f"v_max3_f32 v{m}, v{m}, v{S[j]+i}, v{S[j]+i+1}")
    g(f"s_add_u32 s{sGoff}, s{sGoff}, 2048")
    g(f"s_cmp_lt_u32 s{sGoff}, 131072")
    g("s_cbranch_scc1 L_fb_max")
    for j, m in ((0, M0r), (1, M1r)):
        finish_max(m, j)
        for i in range(16): g(f"v_mov_b32 v{O[j]+i}, 0")
        for i in range(4): g(f"v_mov_b32 v{Lr[j]+i}, 0")
    g(f"s_mov_b32 s{sGoff}, 0")
    g.label("L_fb_loop")
    g(f"buffer_load_dwordx4 {r(K[0][0],4)}, v{vQoff}, s[{sK}:{sK+3}], s{sGoff} offen")
    g(f"buffer_load_dwordx4 {r(K[0][1],4)}, v{vQoff}, s[{sK}:{sK+3}], s{sGoff} offen offset:32")
    g(f"s_mov_b32 m0, s{sBase}")
    g("s_nop 0")
    g(f"buffer_load_dwordx4 v{vL16}, s[{sV}:{sV+3}], s{sGoff} offen lds")
    g(f"buffer_load_dwordx4 v{vL16}, s[{sV}:{sV+3}], s{sGoff} offen offset:1024 lds")
    g("s_waitcnt vmcnt(0)")
    for i in range(4): vread1(0, i)
    qk(S[0], 0, 0, r(CB[0], 16)); qk(S[1], 0, 1, r(CB[1], 16))
    g("s_nop 15")
    for j in range(2):
        for i in range(16): g(f"v_exp_f32 v{S[j]+i}, v{S[j]+i}")
    g("s_waitcnt lgkmcnt(0)")
    g("s_nop 1")
    for j in range(2):
        pv(j, 0, 0, S[j]); pv(j, 0, 1, S[j]); ls(j, 0, S[j]); ls(j, 1, S[j])
    g(f"s_add_u32 s{sGoff}, s{sGoff}, 2048")
    g(f"s_cmp_lt_u32 s{sGoff}, 131072")
    g("s_cbranch_scc1 L_fb_loop")
    g("s_nop 15")
    g("s_nop 3")
    final_store((0, 1), S[2], sP)
    g("s_waitcnt vmcnt(0)")
    g.label("L_fb_next")
    g(f"s_lshr_b32 s{sBad}, s{sBad}, 1")
    g(f"s_add_u32 s{sP}, s{sP}, 4096")
    g(f"s_cmp_lt_u32 s{sP}, 8192")
    g("s_cbranch_scc1 L_fb_pair")
    g("s_branch L_done")
    g.label("L_end")
    g("s_endpgm")
    hdr = open("cdna_kernels/" + NAME + ".s.ref").read().split("; Override launch")[0]
    out = hdr + f"""; Override launch geometry by editing the next line (default: block=256,
; grid=ceil(out_elems/256), lds=0). Harness parses it; keep it on one line.
; @launch grid=(256,1,1) block=(320,1,1) lds={LDS}
.amdgcn_target "amdgcn-amd-amdhsa--gfx950"
.text
.globl {NAME}_kernel
.p2align 8
.type {NAME}_kernel,@function
{NAME}_kernel:
{g.text()}
.section .rodata,"a"
.p2align 6
.amdhsa_kernel {NAME}_kernel
  .amdhsa_next_free_vgpr 256
  .amdhsa_next_free_sgpr {80 if INSTR else 48}
  .amdhsa_accum_offset 256
  .amdhsa_group_segment_fixed_size 0
  .amdhsa_kernarg_size 48
  .amdhsa_user_sgpr_count 2
  .amdhsa_user_sgpr_kernarg_segment_ptr 1
  .amdhsa_system_sgpr_workgroup_id_x 1
.end_amdhsa_kernel
"""
    return out

if __name__ == "__main__":
    out = sys.argv[1] if len(sys.argv) > 1 else f"cdna_kernels/{NAME}.s"
    kw = dict(a.split("=") for a in sys.argv[2:])
    kw = {k: int(v) for k, v in kw.items()}
    open(out, "w").write(gen(**kw))
```

```python
import sys, struct

NAME = "standalone__fused_io_aware_attn__prompt"
def f32bits(x): return struct.unpack("<I", struct.pack("<f", x))[0]

class Gen:
    def __init__(s): s.L = []
    def __call__(s, txt): s.L.append("    " + txt)
    def label(s, l): s.L.append(l + ":")
    def c(s, t): s.L.append("    ; " + t)
    def text(s): return "\n".join(s.L)

def gen(NS=8, R=4, INSTR=0, SLP=12, UNR=1, LO=64, ABL=0, PF=2, W=8, B0=2, ST=0, OT=0, FL=1):
    STF = ['', ' sc1', ' sc0 sc1', ' nt', ' sc1 nt', ' sc0 sc1 nt'][ST]
    g = Gen()
    CK = 4
    D = 2
    KB = CK * 2048
    CH = 2 * KB
    NCH = 64 // CK
    NCHT = NCH + 1
    RING = NS * CH
    READY = RING
    PROG = RING + 1024
    FBL = RING + 2048
    LDS = RING + 2048 + 8192
    U = 0xdddd
    assert R >= D + 1 and R <= NS - 1 and (NCH - 1) % UNR == 0
    S = [0, 16, 32, 48]
    CB = [64, 80]
    O = [96, 112, 128, 144]
    Q = [[160 + 8 * j + 4 * h for h in range(2)] for j in range(4)]
    K = [[192 + 8 * b + 4 * h for h in range(2)] for b in range(2)]
    V = [[208 + 8 * b + 4 * h for h in range(2)] for b in range(2)]
    Lr = [224 + 4 * j for j in range(4)]
    ONES, IDX = 240, 244
    vA, vL16, vSy, vFl, vQoff, vT, vT0 = 245, 246, 247, 248, 249, 250, 251
    T = 252
    def r(b, n): return f"v[{b}:{b+n-1}]"
    sK, sV, sQ, sO = 12, 16, 20, 24
    sWave, sHead, sQB = 28, 29, 30
    sGoff, sBase, sIt, sTmp, sC = 31, 32, 33, 34, 35
    sTmp2, sNeed, sBad, sP, sSpin = 36, 37, 40, 41, 3
    def emit_helper():
        NT = NCHT * CK
        g.label("L_helper")
        hW, hZ, hPa, hP, hOne, hR, hOne2, hOne3 = 4, 8, 12, 13, 14, 15, 5, 6
        sC_, sX, sM, sG = 31, 32, 33, 35
        g(f"v_lshlrev_b32 v{vL16}, 4, v{T+1}")
        g(f"v_add_u32 v{vFl}, 32, v{vQoff}")
        for sr, n in ((sK, 131072), (sV, 131072)):
            g(f"s_mov_b32 s{sr+2}, {n}")
            g(f"s_mov_b32 s{sr+3}, 0x00020000")
        g(f"s_mov_b32 s{sX}, 0")
        for i in range(4): g(f"v_mov_b32 v{hZ+i}, 0")
        g(f"v_add_u32 v{hW}, {READY}, v{vL16}")
        g("s_waitcnt lgkmcnt(0)")
        g(f"ds_write_b128 v{hW}, {r(hZ,4)}")
        g(f"ds_write_b128 v{hW}, {r(hZ,4)} offset:1024")
        g(f"s_add_u32 s{sK}, s6, s{sTmp}")
        g(f"s_addc_u32 s{sK+1}, s7, 0")
        g(f"s_add_u32 s{sV}, s8, s{sTmp}")
        g(f"s_addc_u32 s{sV+1}, s9, 0")
        g.label("L_hgo")
        g(f"s_and_b32 s{sM}, s{sX}, {4*(NS-1)}")
        g(f"s_lshl_b32 s{sM}, s{sM}, {CH.bit_length()-1-2}")
        g(f"s_and_b32 s{sTmp}, s{sX}, 3")
        g(f"s_lshl_b32 s{sTmp}, s{sTmp}, 11")
        g(f"s_add_u32 s{sM}, s{sM}, s{sTmp}")
        g(f"s_mov_b32 m0, s{sM}")
        g(f"s_and_b32 s{sG}, s{sX}, 63")
        g(f"s_lshl_b32 s{sG}, s{sG}, 11")
        g(f"buffer_load_dwordx4 v{vQoff}, s[{sK}:{sK+3}], s{sG} offen lds")
        g(f"s_add_u32 s{sTmp}, s{sM}, 1024")
        g(f"s_mov_b32 m0, s{sTmp}")
        g(f"s_add_u32 s{sTmp}, s{sM}, {KB}")
        g(f"buffer_load_dwordx4 v{vFl}, s[{sK}:{sK+3}], s{sG} offen lds")
        g(f"s_mov_b32 m0, s{sTmp}")
        g(f"s_add_u32 s{sX}, s{sX}, 1")
        g(f"buffer_load_dwordx4 v{vL16}, s[{sV}:{sV+3}], s{sG} offen lds")
        g(f"buffer_load_dwordx4 v{vL16}, s[{sV}:{sV+3}], s{sG} offen offset:1024 lds")
        P1 = 4 * (R + 1)
        g(f"s_cmp_eq_u32 s{sX}, {B0}")
        g("s_cbranch_scc0 L_hnext")
        g("s_waitcnt lgkmcnt(0)")
        g("s_barrier")
        g(f"v_and_b32 v{hP}, 3, v{T+1}")
        g(f"v_lshlrev_b32 v{hPa}, 8, v{hP}")
        g(f"v_add_u32 v{hPa}, {PROG}, v{hPa}")
        g(f"v_mov_b32 v{hOne}, 1")
        g(f"v_mov_b32 v{hOne2}, {W-1}")
        g(f"v_mov_b32 v{hOne3}, 4")
        g(f"v_lshlrev_b32 v{hR}, 2, v{T+1}")
        g(f"v_add_u32 v{hR}, {READY}, v{hR}")
        g(f"s_mov_b32 s{sSpin}, 0x40000")
        g.label("L_hnext")
        g(f"s_cmp_lt_u32 s{sX}, {W}")
        g("s_cbranch_scc1 L_hgo")
        g(f"s_cmp_gt_u32 s{sX}, {P1}")
        g("s_cbranch_scc1 L_hph2")
        g(f"s_waitcnt vmcnt({4*(W-1)})")
        for w in range(4): g(f"ds_add_u32 v{hR}, v{hOne} offset:{256*w}")
        g(f"s_cmp_lt_u32 s{sX}, {P1}")
        g("s_cbranch_scc1 L_hgo")
        g("s_waitcnt vmcnt(0)")
        for w in range(4): g(f"ds_add_u32 v{hR}, v{hOne2} offset:{256*w}")
        g("s_branch L_hchunk")
        g.label("L_hph2")
        g(f"s_and_b32 s{sTmp}, s{sX}, 3")
        g("s_cbranch_scc1 L_hgo")
        g("s_waitcnt vmcnt(0)")
        for w in range(4): g(f"ds_add_u32 v{hR}, v{hOne3} offset:{256*w}")
        g.label("L_hchunk")
        g(f"s_cmp_lt_u32 s{sX}, {NT}")
        g("s_cbranch_scc0 L_hdone")
        g(f"s_lshr_b32 s{sTmp}, s{sX}, 2")
        g(f"s_sub_u32 s{sTmp}, s{sTmp}, {R}")
        g(f"s_mul_i32 s{sTmp}, s{sTmp}, {U}")
        g.label("L_hpoll")
        g(f"ds_read_b32 v{hP}, v{hPa}")
        g("s_waitcnt lgkmcnt(0)")
        g("s_setprio 3")
        g(f"v_cmp_gt_u32 vcc, s{sTmp}, v{hP}")
        g("s_setprio 0")
        g("s_nop 0")
        g("s_cmp_eq_u64 vcc, 0")
        g("s_cbranch_scc1 L_hgo")
        g(f"s_sleep {SLP}")
        g(f"s_sub_u32 s{sSpin}, s{sSpin}, 1")
        g("s_cbranch_scc0 L_hpoll")
        g.label("L_hdone")
        g("s_waitcnt lgkmcnt(0)")
        g("s_endpgm")
    g("s_cmp_ge_u32 s2, 256")
    g("s_cbranch_scc1 L_end")
    g("s_load_dwordx4 s[4:7], s[0:1], 0")
    g("s_load_dwordx4 s[8:11], s[0:1], 16")
    if INSTR:
        g("s_memtime s[44:45]")
        g("s_memrealtime s[52:53]")
        g("s_load_dwordx2 s[56:57], s[0:1], 40")
    NPF = 0
    if PF:
        g("s_getpc_b64 s[42:43]")
        g(f"v_lshlrev_b32 v{T}, 4, v0")
        g(f"global_load_dwordx4 v[0+16:3+16], v{T}, s[42:43]")
        NPF = 1
        if PF > 1:
            g(f"v_add_u32 v{T+1}, 5120, v{T}")
            g(f"global_load_dwordx4 v[0+20:3+20], v{T+1}, s[42:43]")
            NPF = 2
    g(f"v_lshrrev_b32 v{T}, 6, v0")
    g(f"v_and_b32 v{T+1}, 63, v0")
    g(f"v_readfirstlane_b32 s{sWave}, v{T}")
    g(f"s_and_b32 s{sTmp}, s2, 7")
    g(f"s_lshr_b32 s{sTmp2}, s2, 5")
    g(f"s_lshl_b32 s{sTmp}, s{sTmp}, 3")
    g(f"s_add_u32 s{sTmp}, s{sTmp}, s{sTmp2}")
    g(f"s_lshl_b32 s{sTmp}, s{sTmp}, 17")
    g(f"v_and_b32 v{T}, 31, v{T+1}")
    g(f"v_lshrrev_b32 v{T+2}, 5, v{T+1}")
    g(f"v_lshlrev_b32 v{vQoff}, 6, v{T}")
    g(f"v_lshl_add_u32 v{vQoff}, v{T+2}, 4, v{vQoff}")
    g(f"s_cmp_eq_u32 s{sWave}, 4")
    g("s_cbranch_scc1 L_helper")
    g(f"s_bfe_u32 s{sTmp2}, s2, 0x20003")
    g(f"s_lshl_b32 s{sTmp2}, s{sTmp2}, 15")
    g(f"s_lshl_b32 s{sC}, s{sWave}, 13")
    g(f"s_add_u32 s{sTmp2}, s{sTmp2}, s{sC}")
    g(f"s_add_u32 s{sTmp2}, s{sTmp2}, s{sTmp}")
    g(f"s_mov_b32 s{sQ+2}, 8192")
    g(f"s_mov_b32 s{sQ+3}, 0x00020000")
    g("s_waitcnt lgkmcnt(0)")
    g(f"s_add_u32 s{sQ}, s4, s{sTmp2}")
    g(f"s_addc_u32 s{sQ+1}, s5, 0")
    def qload(js):
        for j in js:
            for h in range(2):
                off = j * 2048 + h * 32
                so = "0" if off < 4096 else f"s{sP}"
                g(f"buffer_load_dwordx4 {r(Q[j][h], 4)}, v{vQoff}, s[{sQ}:{sQ+3}], {so} offen offset:{off % 4096}")
    qload((0, 1))
    g("s_barrier")
    g("s_branch L_compute2")
    emit_helper()
    g.label("L_compute2")
    g(f"s_add_u32 s{sK}, s6, s{sTmp}")
    g(f"s_addc_u32 s{sK+1}, s7, 0")
    g(f"s_add_u32 s{sV}, s8, s{sTmp}")
    g(f"s_addc_u32 s{sV+1}, s9, 0")
    g(f"s_add_u32 s{sO}, s10, s{sTmp2}")
    g(f"s_addc_u32 s{sO+1}, s11, 0")
    for sr, n in ((sK, 131072), (sV, 131072), (sO, 8192)):
        g(f"s_mov_b32 s{sr+2}, {n}")
        g(f"s_mov_b32 s{sr+3}, 0x00020000")
    g(f"s_mov_b32 s{sSpin}, 0x40000")
    g(f"s_mov_b32 s{sP}, 4096")
    g(f"s_lshl_b32 s{sTmp}, s{sWave}, 8")
    g(f"s_add_u32 s{sTmp}, s{sTmp}, {READY}")
    g(f"v_lshlrev_b32 v{vL16}, 4, v{T+1}")
    g(f"v_lshlrev_b32 v{vSy}, 2, v{T+1}")
    g(f"v_add_u32 v{vSy}, s{sTmp}, v{vSy}")
    g(f"v_mov_b32 v{vA}, v{vL16}")
    g(f"v_and_b32 v{T}, 15, v{T+1}")
    g(f"v_lshrrev_b32 v{T}, 2, v{T}")
    g(f"v_lshl_add_u32 v{T}, v{T+2}, 3, v{T}")
    g(f"v_lshlrev_b32 v{T}, 6, v{T}")
    g(f"v_lshrrev_b32 v{T+3}, 4, v{T+1}")
    g(f"v_and_b32 v{T+3}, 1, v{T+3}")
    g(f"v_lshl_add_u32 v{T}, v{T+3}, 5, v{T}")
    g(f"v_and_b32 v{T+3}, 3, v{T+1}")
    g(f"v_lshl_add_u32 v{T}, v{T+3}, 3, v{T}")
    g(f"v_add_u32 v{vT0}, {KB}, v{T}")
    g(f"v_mov_b32 v{vT}, v{vT0}")
    g(f"v_lshrrev_b32 v{T+2}, 2, v{T+1}")
    g(f"v_and_b32 v{T+2}, 1, v{T+2}")
    g(f"v_cmp_eq_u32 vcc, 0, v{T+2}")
    g(f"v_mov_b32 v{T+3}, 0x3f803f80")
    g(f"v_mov_b32 v{IDX}, {U:#x}")
    g(f"v_cndmask_b32 v{ONES}, 0, v{T+3}, vcc")
    g(f"v_cndmask_b32 v{ONES+1}, 0, v{T+3}, vcc")
    g(f"v_cndmask_b32 v{ONES+2}, v{T+3}, 0, vcc")
    g(f"v_cndmask_b32 v{ONES+3}, v{T+3}, 0, vcc")
    for j in range(4):
        for i in range(0, 16, 2): g(f"v_pk_mov_b32 {r(O[j]+i,2)}, 0, 0")
        for i in range(0, 4, 2): g(f"v_pk_mov_b32 {r(Lr[j]+i,2)}, 0, 0")
    cbits = f32bits(1.4426950408889634 * 32 ** -0.5)
    g(f"s_mov_b32 s{sC}, 0x{cbits:08x}")
    g(f"s_mov_b32 s{sBase}, 0")
    g(f"s_mov_b32 s{sNeed}, 1")
    g(f"s_mov_b32 s{sBad}, 0")
    if INSTR == 1: g("s_memtime s[60:61]")
    g("s_waitcnt vmcnt(0)")
    if INSTR == 1: g("s_memtime s[62:63]")
    def qscale(js):
        for j in js:
            for h in range(2):
                for i in range(4):
                    x = Q[j][h] + i
                    t = T + 2 * (i % 2)
                    g(f"v_lshlrev_b32 v{t}, 16, v{x}")
                    g(f"v_and_b32 v{t+1}, 0xffff0000, v{x}")
                    g(f"v_mul_f32 v{t}, s{sC}, v{t}")
                    g(f"v_mul_f32 v{t+1}, s{sC}, v{t+1}")
                    g(f"v_cvt_pk_bf16_f32 v{x}, v{t}, v{t+1}")
    g(f"ds_read_b32 v{vFl}, v{vSy}")
    qload((2, 3))
    if OT: g(f"buffer_load_dword v{CB[1]}, v{vQoff}, s[{sO}:{sO+3}], 0 offen")
    qscale((0, 1))
    slow = []
    def flagwait(name):
        g("s_waitcnt lgkmcnt(0)")
        g(f"v_readfirstlane_b32 s{sTmp}, v{vFl}")
        g("s_nop 0")
        g(f"s_cmp_ge_u32 s{sTmp}, s{sNeed}")
        g(f"s_cbranch_scc0 L_slow_{name}")
        g.label(f"L_ok_{name}")
        slow.append(name)
    flagwait("k0")
    if INSTR == 1:
        g("s_memtime s[64:65]")
        g("s_waitcnt lgkmcnt(0)")
    def kread1(kt, h):
        g(f"ds_read_b128 {r(K[kt%2][h],4)}, v{vA} offset:{(kt % CK) * 2048 + 1024*h}")
    def vread1(kt, i):
        g(f"ds_read_b64_tr_b16 {r(V[kt%2][i//2] + 2*(i%2),2)}, v{vT} offset:{(kt % CK) * 2048 + (0, 256, 1024, 1280)[i]}")
    def qk(dst, kbuf, j, cin):
        g(f"v_mfma_f32_32x32x16_bf16 {r(dst,16)}, {r(K[kbuf][0],4)}, {r(Q[j][0],4)}, {cin}")
        g(f"v_mfma_f32_32x32x16_bf16 {r(dst,16)}, {r(K[kbuf][1],4)}, {r(Q[j][1],4)}, {r(dst,16)}")
    def pairmax(sa, sb_, cb):
        m = T
        g(f"v_max3_f32 v{m}, v{sa}, v{sa+1}, v{sa+2}")
        g(f"v_max3_f32 v{m+1}, v{sa+3}, v{sa+4}, v{sa+5}")
        g(f"v_max3_f32 v{m+2}, v{sa+6}, v{sa+7}, v{sa+8}")
        g(f"v_max3_f32 v{m+3}, v{sa+9}, v{sa+10}, v{sa+11}")
        g(f"v_max3_f32 v{m}, v{m}, v{sa+12}, v{sa+13}")
        g(f"v_max3_f32 v{m+1}, v{m+1}, v{sa+14}, v{sa+15}")
        for i in range(8):
            g(f"v_max3_f32 v{m+i%4}, v{m+i%4}, v{sb_+2*i}, v{sb_+2*i+1}")
        g(f"v_max3_f32 v{m}, v{m}, v{m+2}, v{m+3}")
        g(f"v_max_f32 v{m}, v{m}, v{m+1}")
        finish_max(m, cb)
    def finish_max(m, cb):
        g(f"v_mov_b32 v{m+1}, v{m}")
        g("s_nop 1")
        g(f"v_permlane32_swap_b32 v{m}, v{m+1}")
        g("s_nop 1")
        g(f"v_max_f32 v{m}, v{m}, v{m+1}")
        g(f"v_sub_f32 v{m}, 0, v{m}")
        for i in range(16): g(f"v_mov_b32 v{CB[cb]+i}, v{m}")
    kread1(0, 0); kread1(0, 1)
    for i in range(4): vread1(0, i)
    g("s_waitcnt lgkmcnt(4)")
    qk(S[0], 0, 0, "0"); qk(S[1], 0, 1, "0")
    g(f"ds_read_b32 v{vFl}, v{vSy}")
    g(f"s_mov_b32 s{sNeed}, 2")
    g("s_nop 7")
    pairmax(S[0], S[1], 0)
    g("s_nop 1")
    qk(S[0], 0, 0, r(CB[0], 16))
    flagwait("k1")
    kread1(1, 0); kread1(1, 1)
    g(f"ds_read_b32 v{vFl}, v{vSy}")
    if INSTR:
        g("s_memtime s[46:47]")
        g("s_waitcnt lgkmcnt(0)")
    g("s_nop 7")
    g("s_nop 1")
    def pv(j, vb, half, sbuf):
        if ABL == 3:
            g(f"v_mfma_f32_32x32x16_bf16 {r(O[j],16)}, {r(V[vb][half],4)}, {r(Q[j][half], 4)}, {r(O[j],16)}"); g("s_nop 0"); g("s_nop 0"); return
        if ABL == 4:
            g("s_nop 2"); return
        g(f"v_smfmac_f32_32x32x32_bf16 {r(O[j],16)}, {r(V[vb][half],4)}, {r(sbuf + 8*half, 8)}, v{IDX}")
    def ls(j, half, sbuf):
        if ABL == 1:
            g("s_nop 2"); return
        g(f"v_smfmac_f32_16x16x64_bf16 {r(Lr[j],4)}, {r(ONES,4)}, {r(sbuf + 8*half, 8)}, v{IDX}")
    def region(name, order, prev_j, next_j, has_next, hooks=None, extra=None, skip_last2=False, lead2=False):
        NQ = len(order)
        NST = NQ * CK
        sched = {}
        def at(kt, jj, slot, fn): sched.setdefault((kt * NQ + jj, slot), []).append(fn)
        kj = 2 if NQ == 4 else 1
        for kt in range(CK):
            at(kt, 0, "pv2", lambda: g("s_waitcnt lgkmcnt(0)"))
            if kt + 1 < CK or has_next:
                if kt + 1 == CK: at(kt, 0, "qkb", lambda: g(f"v_add_u32 v{vT}, s{sBase}, v{vT0}"))
                if NQ == 4:
                    for i, (jj, sl) in enumerate(((0, "l2"), (0, "l1"), (1, "l2"), (1, "l1"))):
                        at(kt, jj, sl, lambda kt=kt, i=i: vread1(kt + 1, i))
                else:
                    for i, sl in enumerate(("l2", "l2", "l1", "l1")):
                        at(kt, 0, sl, lambda kt=kt, i=i: vread1(kt + 1, i))
            if kt + 2 < CK or has_next:
                if kt + 2 == CK: at(kt, kj, "qkb", lambda: g(f"v_add_u32 v{vA}, s{sBase}, v{vL16}"))
                at(kt, kj, "l2", lambda kt=kt: kread1(kt + 2, 0))
                at(kt, kj, "l1", lambda kt=kt: kread1(kt + 2, 1))
        if has_next and NQ == 4:
            at(CK - 3, 3, "l2", lambda: g(f"ds_read_b32 v{vFl}, v{vSy}"))
            at(CK - 2, 1, "qka", lambda: g(f"s_add_u32 s{sNeed}, s{sNeed}, 4"))
            at(CK - 2, 1, "qkb", lambda: g(f"s_add_u32 s{sBase}, s{sBase}, {CH}"))
            at(CK - 2, 1, "qkb", lambda: g(f"v_readfirstlane_b32 s{sTmp}, v{vFl}"))
            at(CK - 2, 1, "pv2", lambda: g(f"s_and_b32 s{sBase}, s{sBase}, {RING-1}"))
            def chk():
                g(f"s_cmp_ge_u32 s{sTmp}, s{sNeed}")
                g(f"s_cbranch_scc0 L_slow_{name}")
                g.label(f"L_ok_{name}")
                slow.append(name)
            at(CK - 2, 1, "pv1", chk)
            at(CK - 1, 3, "l2", lambda: g(f"ds_add_u32 v{vSy}, v{IDX} offset:1024"))
        if has_next and NQ == 2:
            for kt in range(CK):
                need = kt + 3 if kt < CK - 1 else 2 * CK
                if kt > 0: at(kt - 1, 1, "pv1", lambda: g(f"ds_read_b32 v{vFl}, v{vSy}"))
                def chk(kt=kt, need=need):
                    g(f"s_mov_b32 s{sNeed}, {need}")
                    g(f"v_readfirstlane_b32 s{sTmp}, v{vFl}")
                    if kt == CK - 2: g(f"s_mov_b32 s{sBase}, {CH}")
                    else: g("s_nop 0")
                    g(f"s_cmp_ge_u32 s{sTmp}, s{sNeed}")
                    g(f"s_cbranch_scc0 L_slow_{name}{kt}")
                    g.label(f"L_ok_{name}{kt}")
                    slow.append(f"{name}{kt}")
                at(kt, 0, "pv1", chk)
            at(CK - 1, 1, "pv1", lambda: g(f"ds_add_u32 v{vSy}, v{IDX} offset:1024"))
        if extra:
            for k, fns in extra.items(): sched.setdefault(k, []).extend(fns)
        for n in range(NST):
            kt, jj = n // NQ, n % NQ
            j = order[jj]
            sb = S[n % 4]; sprev = S[(n - 1) % 4]; snext = S[(n + 1) % 4]
            if n == 0: prev = None if prev_j is None else (CK - 1, prev_j)
            else: prev = ((n - 1) // NQ, order[(n - 1) % NQ])
            if n == NST - 1: nxt = None if next_j is None else (CK, next_j)
            else: nxt = ((n + 1) // NQ, order[(n + 1) % NQ])
            e = iter(range(16))
            def ex(k):
                for _ in range(k):
                    i = next(e); g(f"v_exp_f32 v{sb+i}, v{sb+i}" if ABL != 5 else "s_nop 1")
            def slot(nm):
                for fn in sched.get((n, nm), []): fn()
            g.c(f"---- {name} step {n}: kt={kt} j={j}")
            if n == 0 and lead2:
                g(f"v_exp_f32 v{sprev+14}, v{sprev+14}")
                g(f"v_exp_f32 v{sprev+15}, v{sprev+15}")
            if hooks and (n, "top") in hooks: hooks[(n, "top")]()
            if nxt and ABL == 2: g(f"v_mfma_f32_32x32x16_bf16 {r(snext,16)}, {r(K[nxt[0]%2][0],4)}, {r(Q[nxt[1]][0],4)}, 0")
            elif nxt: g(f"v_mfma_f32_32x32x16_bf16 {r(snext,16)}, {r(K[nxt[0]%2][0],4)}, {r(Q[nxt[1]][0],4)}, {r(CB[nxt[1]//2],16)}")
            slot("qka")
            ex(3)
            if nxt: g(f"v_mfma_f32_32x32x16_bf16 {r(snext,16)}, {r(K[nxt[0]%2][1],4)}, {r(Q[nxt[1]][1],4)}, {r(snext,16)}")
            slot("qkb")
            ex(3)
            if prev: pv(prev[1], prev[0] % 2, 1, sprev)
            slot("pv2")
            ex(3)
            if prev: ls(prev[1], 1, sprev)
            slot("l2")
            ex(2)
            pv(j, kt % 2, 0, sb)
            slot("pv1")
            ex(3)
            ls(j, 0, sb)
            slot("l1")
            if not (skip_last2 and n == NST - 1): ex(2)
            if hooks and (n, "end") in hooks: hooks[(n, "end")]()
    def q23():
        g.c("Q tiles 2,3: scale, stand-in max from chunk 1 tile 0")
        g("s_waitcnt vmcnt(0)")
        qscale((2, 3))
        g("s_nop 1")
        qk(S[0], 0, 2, "0"); qk(S[1], 0, 3, "0")
        g("s_nop 7")
        g("s_nop 1")
        pairmax(S[0], S[1], 1)
        g("s_nop 1")
    region("head", (0, 1), None, 2, True, hooks={(2 * CK - 1, "top"): q23},
           extra={(2 * CK - 1, "pv1"): [lambda: g(f"s_mov_b32 s{sIt}, 1")]}, skip_last2=True)
    if INSTR == 2: g("s_memtime s[60:61]")
    g.L.append(".p2align 6")
    g.label("L_loop")
    for u in range(UNR):
        ex_ = None
        if u == UNR - 1:
            ex_ = {(4 * CK - 1, "pv1"): [lambda: g(f"s_add_u32 s{sIt}, s{sIt}, {UNR}"), lambda: g(f"s_cmp_lt_u32 s{sIt}, {NCH}")]}
        region(f"body{u}", (2, 3, 0, 1), 1, 2, True, extra=ex_, skip_last2=True, lead2=True)
    if INSTR == 2:
        g("s_cbranch_scc0 L_exit")
        g(f"s_cmp_eq_u32 s{sIt}, {1 + UNR}")
        g("s_cbranch_scc0 L_loop")
        g("s_memtime s[62:63]")
        g("s_branch L_loop")
        g.label("L_exit")
        g("s_memtime s[64:65]")
    else:
        g("s_cbranch_scc1 L_loop")
    def check_store(js, bit, P):
        a, b = js
        X = P
        first = True
        for x, j in enumerate(js):
            for i in range(0, 16, 2):
                t = X + (i // 2) % 4
                if x == 0 and i < 8: g(f"v_maximum3_f32 v{t}, abs(v{O[j]+i}), abs(v{O[j]+i+1}), v{Lr[a]}")
                else: g(f"v_maximum3_f32 v{t}, abs(v{O[j]+i}), abs(v{O[j]+i+1}), v{t}")
        g(f"v_maximum3_f32 v{X}, v{X}, v{X+1}, v{X+2}")
        g(f"v_maximum3_f32 v{X+4}, v{Lr[a]}, v{Lr[b]}, v{Lr[b]}")
        g(f"v_minimum3_f32 v{X+5}, v{Lr[a]}, v{Lr[b]}, v{Lr[b]}")
        g(f"v_maximum3_f32 v{X}, v{X}, v{X+3}, v{X+3}")
        g(f"v_mov_b32 v{X+1}, 0x5f800000")
        g(f"v_mov_b32 v{X+2}, 0x{(127 - LO) << 23:08x}")
        g(f"v_mov_b32 v{X+3}, 0x7f800000")
        g(f"v_cmp_nlt_f32 s[38:39], v{X+4}, v{X+1}")
        g(f"v_cmp_nlt_f32 vcc, v{X}, v{X+3}")
        g(f"v_cmp_nge_f32 s[42:43], v{X+5}, v{X+2}")
        g("s_nop 1")
        g("s_or_b64 vcc, vcc, s[38:39]")
        g("s_or_b64 vcc, vcc, s[42:43]")
        g("s_cmp_lg_u64 vcc, 0")
        g(f"s_cselect_b32 s{sTmp}, {bit}, 0")
        g(f"s_or_b32 s{sBad}, s{sBad}, s{sTmp}")
        final_store(js, P, None)
    def final_store(js, P, soff):
        a, b = js
        g(f"v_rcp_f32 v{T}, v{Lr[a]}")
        g(f"v_rcp_f32 v{T+2}, v{Lr[b]}")
        g(f"v_mov_b32 v{T+1}, v{T}")
        g(f"v_mov_b32 v{T+3}, v{T+2}")
        for x, j in enumerate(js):
            for i in range(0, 16, 2): g(f"v_pk_mul_f32 {r(O[j]+i,2)}, {r(O[j]+i,2)}, {r(T+2*x,2)}")
            PP = P + 8 * x
            for gq in range(4):
                g(f"v_cvt_pk_bf16_f32 v{PP+2*gq}, v{O[j]+4*gq}, v{O[j]+4*gq+1}")
                g(f"v_cvt_pk_bf16_f32 v{PP+2*gq+1}, v{O[j]+4*gq+2}, v{O[j]+4*gq+3}")
            g("s_nop 1")
            for pr in range(2):
                bb = PP + 4 * pr
                g(f"v_permlane32_swap_b32 v{bb}, v{bb+2}")
                g(f"v_permlane32_swap_b32 v{bb+1}, v{bb+3}")
            g("s_nop 1")
            if FL:
                for i in range(4): g(f"v_permlane16_swap_b32 v{PP+i}, v{PP+4+i}")
                g("s_nop 0")
            for pr in range(2):
                va = vFl if FL else vQoff
                po = pr * 1024 if FL else pr * 32
                if soff is None:
                    off = j * 2048 + po
                    so = "0" if off < 4096 else f"s{sP}"
                    g(f"buffer_store_dwordx4 {r(PP+4*pr,4)}, v{va}, s[{sO}:{sO+3}], {so} offen offset:{off % 4096}{STF}")
                else:
                    g(f"buffer_store_dwordx4 {r(PP+4*pr,4)}, v{va}, s[{sO}:{sO+3}], s{soff} offen offset:{x*2048 + po}")
    def store_addr():
        g(f"v_and_b32 v{vFl}, 0xf0, v{vL16}")
        g(f"v_lshlrev_b32 v{vFl}, 2, v{vFl}")
        g(f"v_and_b32 v{T}, 0x100, v{vL16}")
        g(f"v_lshrrev_b32 v{T}, 3, v{T}")
        g(f"v_or_b32 v{vFl}, v{vFl}, v{T}")
        g(f"v_and_b32 v{T}, 0x200, v{vL16}")
        g(f"v_lshrrev_b32 v{T}, 5, v{T}")
        g(f"v_or_b32 v{vFl}, v{vFl}, v{T}")
    def first_pair():
        if FL: store_addr()
        check_store((0, 1), 1, Q[0][0])
    region("tail", (2, 3), 1, None, False, hooks={(1, "end"): first_pair}, lead2=True)
    g("s_nop 1")
    pv(3, (CK - 1) % 2, 1, S[3]); ls(3, 1, S[3])
    if INSTR: g("s_memtime s[48:49]")
    g("s_nop 15")
    check_store((2, 3), 2, Q[2][0])
    g(f"s_cmp_lg_u32 s{sBad}, 0")
    if not ABL: g("s_cbranch_scc1 L_fallback")
    g.label("L_done")
    if INSTR:
        g("s_waitcnt vmcnt(0)")
        g("s_memtime s[50:51]")
        g("s_memrealtime s[54:55]")
        g("s_waitcnt lgkmcnt(0)")
        g("s_mov_b32 s68, s56")
        g("s_mov_b32 s69, s57")
        g("s_mov_b32 s70, 0x100000")
        g("s_mov_b32 s71, 0x00020000")
        g(f"s_lshl_b32 s{sTmp}, s2, 2")
        g(f"s_add_u32 s{sTmp}, s{sTmp}, s{sWave}")
        g(f"s_lshl_b32 s{sTmp}, s{sTmp}, 6")
        g("s_getreg_b32 s58, hwreg(HW_REG_XCC_ID)")
        g("s_getreg_b32 s59, hwreg(HW_REG_HW_ID)")
        for i, sr in enumerate((44, 46, 48, 50, 52, 54, 58, 59, 60, 60, 62, 64)):
            g(f"v_mov_b32 v{40+i}, s{sr}")
        g(f"v_mov_b32 v39, s{sTmp}")
        g("s_mov_b64 exec, 1")
        g("buffer_store_dwordx4 v[40:43], v39, s[68:71], 0 offen")
        g("buffer_store_dwordx4 v[44:47], v39, s[68:71], 0 offen offset:16")
        g("buffer_store_dwordx4 v[48:51], v39, s[68:71], 0 offen offset:32")
        g("s_waitcnt vmcnt(0)")
    g("s_endpgm")
    for name in slow:
        g.label(f"L_slow_{name}")
        g(f"s_sub_u32 s{sSpin}, s{sSpin}, 1")
        g("s_cbranch_scc1 L_end")
        g("s_sleep 1")
        g(f"ds_read_b32 v{vFl}, v{vSy}")
        g("s_waitcnt lgkmcnt(0)")
        g(f"v_readfirstlane_b32 s{sTmp}, v{vFl}")
        g("s_nop 0")
        g(f"s_cmp_ge_u32 s{sTmp}, s{sNeed}")
        g(f"s_cbranch_scc0 L_slow_{name}")
        g(f"s_branch L_ok_{name}")
    g.label("L_fallback")
    g("s_waitcnt vmcnt(0) lgkmcnt(0)")
    g(f"s_lshl_b32 s{sBase}, s{sWave}, 11")
    g(f"s_add_u32 s{sBase}, s{sBase}, {FBL}")
    g(f"s_sub_u32 s{sTmp}, s{sBase}, {KB}")
    g(f"v_add_u32 v{vT}, s{sTmp}, v{vT0}")
    g(f"s_mov_b32 s{sP}, 0")
    g.label("L_fb_pair")
    g(f"s_and_b32 s{sTmp}, s{sBad}, 1")
    g("s_cbranch_scc0 L_fb_next")
    for j in range(2):
        for h in range(2):
            g(f"buffer_load_dwordx4 {r(Q[j][h], 4)}, v{vQoff}, s[{sQ}:{sQ+3}], s{sP} offen offset:{j*2048 + h*32}")
    g("s_waitcnt vmcnt(0)")
    qscale((0, 1))
    M0r, M1r = S[2], S[2] + 4
    g(f"v_mov_b32 v{M0r}, 0xff800000")
    g(f"v_mov_b32 v{M1r}, 0xff800000")
    g(f"s_mov_b32 s{sGoff}, 0")
    g.label("L_fb_max")
    g(f"buffer_load_dwordx4 {r(K[0][0],4)}, v{vQoff}, s[{sK}:{sK+3}], s{sGoff} offen")
    g(f"buffer_load_dwordx4 {r(K[0][1],4)}, v{vQoff}, s[{sK}:{sK+3}], s{sGoff} offen offset:32")
    g("s_waitcnt vmcnt(0)")
    qk(S[0], 0, 0, "0"); qk(S[1], 0, 1, "0")
    g("s_nop 15")
    for j, m in ((0, M0r), (1, M1r)):
        for i in range(0, 16, 2):
            g(f"v_max3_f32 v{m}, v{m}, v{S[j]+i}, v{S[j]+i+1}")
    g(f"s_add_u32 s{sGoff}, s{sGoff}, 2048")
    g(f"s_cmp_lt_u32 s{sGoff}, 131072")
    g("s_cbranch_scc1 L_fb_max")
    for j, m in ((0, M0r), (1, M1r)):
        finish_max(m, j)
        for i in range(16): g(f"v_mov_b32 v{O[j]+i}, 0")
        for i in range(4): g(f"v_mov_b32 v{Lr[j]+i}, 0")
    g(f"s_mov_b32 s{sGoff}, 0")
    g.label("L_fb_loop")
    g(f"buffer_load_dwordx4 {r(K[0][0],4)}, v{vQoff}, s[{sK}:{sK+3}], s{sGoff} offen")
    g(f"buffer_load_dwordx4 {r(K[0][1],4)}, v{vQoff}, s[{sK}:{sK+3}], s{sGoff} offen offset:32")
    g(f"s_mov_b32 m0, s{sBase}")
    g("s_nop 0")
    g(f"buffer_load_dwordx4 v{vL16}, s[{sV}:{sV+3}], s{sGoff} offen lds")
    g(f"buffer_load_dwordx4 v{vL16}, s[{sV}:{sV+3}], s{sGoff} offen offset:1024 lds")
    g("s_waitcnt vmcnt(0)")
    for i in range(4): vread1(0, i)
    qk(S[0], 0, 0, r(CB[0], 16)); qk(S[1], 0, 1, r(CB[1], 16))
    g("s_nop 15")
    for j in range(2):
        for i in range(16): g(f"v_exp_f32 v{S[j]+i}, v{S[j]+i}")
    g("s_waitcnt lgkmcnt(0)")
    g("s_nop 1")
    for j in range(2):
        pv(j, 0, 0, S[j]); pv(j, 0, 1, S[j]); ls(j, 0, S[j]); ls(j, 1, S[j])
    g(f"s_add_u32 s{sGoff}, s{sGoff}, 2048")
    g(f"s_cmp_lt_u32 s{sGoff}, 131072")
    g("s_cbranch_scc1 L_fb_loop")
    g("s_nop 15")
    g("s_nop 3")
    final_store((0, 1), S[2], sP)
    g("s_waitcnt vmcnt(0)")
    g.label("L_fb_next")
    g(f"s_lshr_b32 s{sBad}, s{sBad}, 1")
    g(f"s_add_u32 s{sP}, s{sP}, 4096")
    g(f"s_cmp_lt_u32 s{sP}, 8192")
    g("s_cbranch_scc1 L_fb_pair")
    g("s_branch L_done")
    g.label("L_end")
    g("s_endpgm")
    hdr = open("cdna_kernels/" + NAME + ".s.ref").read().split("; Override launch")[0]
    out = hdr + f"""; Override launch geometry by editing the next line (default: block=256,
; grid=ceil(out_elems/256), lds=0). Harness parses it; keep it on one line.
; @launch grid=(256,1,1) block=(320,1,1) lds={LDS}
.amdgcn_target "amdgcn-amd-amdhsa--gfx950"
.text
.globl {NAME}_kernel
.p2align 8
.type {NAME}_kernel,@function
{NAME}_kernel:
{g.text()}
.section .rodata,"a"
.p2align 6
.amdhsa_kernel {NAME}_kernel
  .amdhsa_next_free_vgpr 256
  .amdhsa_next_free_sgpr {80 if INSTR else 48}
  .amdhsa_accum_offset 256
  .amdhsa_group_segment_fixed_size 0
  .amdhsa_kernarg_size 48
  .amdhsa_user_sgpr_count 2
  .amdhsa_user_sgpr_kernarg_segment_ptr 1
  .amdhsa_system_sgpr_workgroup_id_x 1
.end_amdhsa_kernel
"""
    return out

if __name__ == "__main__":
    out = sys.argv[1] if len(sys.argv) > 1 else f"cdna_kernels/{NAME}.s"
    kw = dict(a.split("=") for a in sys.argv[2:])
    kw = {k: int(v) for k, v in kw.items()}
    open(out, "w").write(gen(**kw))
```

```python
import sys, struct

NAME = "standalone__fused_io_aware_attn__prompt"
def f32bits(x): return struct.unpack("<I", struct.pack("<f", x))[0]

class Gen:
    def __init__(s): s.L = []
    def __call__(s, txt): s.L.append("    " + txt)
    def label(s, l): s.L.append(l + ":")
    def c(s, t): s.L.append("    ; " + t)
    def text(s): return "\n".join(s.L)

def gen(NS=8, R=4, INSTR=0, SLP=12, UNR=1, LO=64, ABL=0, PF=2, W=8, B0=2, ST=1, OT=0, FL=1, PFW=256, QNT=1, KNT=0, AB=0, QD=1, GROW=1):
    if AB: ABL = 99
    STF = ['', ' sc1', ' sc0 sc1', ' nt', ' sc1 nt', ' sc0 sc1 nt'][ST]
    g = Gen()
    CK = 4
    D = 2
    KB = CK * 2048
    CH = 2 * KB
    NCH = 64 // CK
    NCHT = NCH + 1
    RING = NS * CH
    FO = 2048
    READY = 0
    PROG = 1024
    FBL = RING + 2048
    LDS = RING + 2048 + 8192
    U = 0xdddd
    assert R >= D + 1 and R <= NS - 1 and (NCH - 1) % UNR == 0
    S = [0, 16, 32, 48]
    CB = [64, 80]
    O = [96, 112, 128, 144]
    Q = [[160 + 8 * j + 4 * h for h in range(2)] for j in range(4)]
    K = [[192 + 8 * b + 4 * h for h in range(2)] for b in range(2)]
    V = [[208 + 8 * b + 4 * h for h in range(2)] for b in range(2)]
    Lr = [224 + 4 * j for j in range(4)]
    ONES, IDX = 240, 244
    vA, vL16, vSy, vFl, vQoff, vT, vT0 = 245, 246, 247, 248, 249, 250, 251
    T = 252
    def r(b, n): return f"v[{b}:{b+n-1}]"
    sK, sV, sQ, sO = 12, 16, 20, 24
    sWave, sHead, sQB = 28, 29, 30
    sGoff, sBase, sIt, sTmp, sC = 31, 32, 33, 34, 35
    sTmp2, sNeed, sBad, sP, sSpin = 36, 37, 40, 41, 3
    def emit_helper():
        NT = NCHT * CK
        P1 = 4 * (R + 1)
        hZ, hPa, hP, hOne, hOne2, hOne3 = 8, 12, 13, 14, 5, 6
        sX, sM, sG = 32, 33, 35
        knt = ' nt' if KNT else ''
        def call(): g("s_call_b64 s[38:39], L_issue")
        def pub(reg): g(f"ds_add_u32 v{vL16}, v{reg}")
        g.label("L_issue")
        g(f"s_and_b32 s{sM}, s{sX}, {4*(NS-1)}")
        g(f"s_lshl_b32 s{sM}, s{sM}, {CH.bit_length()-1-2}")
        g(f"s_and_b32 s{sTmp}, s{sX}, 3")
        g(f"s_lshl_b32 s{sTmp}, s{sTmp}, 11")
        g(f"s_add_u32 s{sM}, s{sM}, s{sTmp}")
        g(f"s_add_u32 s{sM}, s{sM}, {FO}")
        g(f"s_mov_b32 m0, s{sM}")
        g(f"s_and_b32 s{sG}, s{sX}, 63")
        g(f"s_lshl_b32 s{sG}, s{sG}, 11")
        g(f"buffer_load_dwordx4 v{vQoff}, s[{sK}:{sK+3}], s{sG} offen{knt} lds")
        g(f"s_add_u32 s{sTmp}, s{sM}, 1024")
        g(f"s_mov_b32 m0, s{sTmp}")
        g(f"s_add_u32 s{sTmp}, s{sM}, {KB}")
        g(f"buffer_load_dwordx4 v{vFl}, s[{sK}:{sK+3}], s{sG} offen{knt} lds")
        g(f"s_mov_b32 m0, s{sTmp}")
        g(f"s_add_u32 s{sX}, s{sX}, 1")
        g(f"buffer_load_dwordx4 v{vL16}, s[{sV}:{sV+3}], s{sG} offen{knt} lds")
        g(f"buffer_load_dwordx4 v{vL16}, s[{sV}:{sV+3}], s{sG} offen offset:1024{knt} lds")
        g("s_setpc_b64 s[38:39]")
        g.label("L_helper")
        g(f"v_lshlrev_b32 v{vL16}, 4, v{T+1}")
        g(f"v_add_u32 v{vFl}, 32, v{vQoff}")
        for sr, n in ((sK, 131072), (sV, 131072)):
            g(f"s_mov_b32 s{sr+2}, {n}")
            g(f"s_mov_b32 s{sr+3}, 0x00020000")
        g(f"s_mov_b32 s{sX}, 0")
        for i in range(4): g(f"v_mov_b32 v{hZ+i}, 0")
        g("s_waitcnt lgkmcnt(0)")
        g(f"s_add_u32 s{sK}, s6, s{sTmp}")
        g(f"s_addc_u32 s{sK+1}, s7, 0")
        g(f"s_add_u32 s{sV}, s8, s{sTmp}")
        g(f"s_addc_u32 s{sV+1}, s9, 0")
        call()
        g(f"ds_write_b128 v{vL16}, {r(hZ,4)}")
        g(f"ds_write_b128 v{vL16}, {r(hZ,4)} offset:1024")
        call()
        g("s_waitcnt lgkmcnt(0)")
        g("s_barrier")
        W0 = 4 if GROW else W
        for _ in range(W0 - 2): call()
        g(f"v_and_b32 v{hP}, 3, v{T+1}")
        g(f"v_lshlrev_b32 v{hPa}, 8, v{hP}")
        g(f"v_mov_b32 v{hOne}, 1")
        g(f"v_mov_b32 v{hOne2}, {W-1}")
        g(f"v_mov_b32 v{hOne3}, 4")
        g(f"s_mov_b32 s{sSpin}, 0x40000")
        for w in range(W0, W):
            g(f"s_waitcnt vmcnt({4*(w-1)})")
            pub(hOne)
            call(); call()
        g.label("L_hph1")
        g(f"s_waitcnt vmcnt({4*(W-1)})")
        pub(hOne)
        g(f"s_cmp_lt_u32 s{sX}, {P1}")
        g("s_cbranch_scc0 L_hdrain")
        call()
        g("s_branch L_hph1")
        g.label("L_hdrain")
        g("s_waitcnt vmcnt(0)")
        pub(hOne2)
        g.label("L_hchunk")
        g(f"s_lshr_b32 s{sTmp2}, s{sX}, 2")
        g(f"s_sub_u32 s{sTmp2}, s{sTmp2}, {R}")
        g(f"s_mul_i32 s{sTmp2}, s{sTmp2}, {U}")
        g.label("L_hpoll")
        g(f"ds_read_b32 v{hP}, v{hPa} offset:{PROG}")
        g("s_waitcnt lgkmcnt(0)")
        g("s_setprio 3")
        g(f"v_cmp_gt_u32 vcc, s{sTmp2}, v{hP}")
        g("s_setprio 0")
        g("s_nop 0")
        g("s_cmp_eq_u64 vcc, 0")
        g("s_cbranch_scc1 L_hgo")
        g(f"s_sleep {SLP}")
        g(f"s_sub_u32 s{sSpin}, s{sSpin}, 1")
        g("s_cbranch_scc0 L_hpoll")
        g("s_endpgm")
        g.label("L_hgo")
        for _ in range(4): call()
        g("s_waitcnt vmcnt(0)")
        pub(hOne3)
        g(f"s_cmp_lt_u32 s{sX}, {NT}")
        g("s_cbranch_scc1 L_hchunk")
        g("s_waitcnt lgkmcnt(0)")
        g("s_endpgm")
    g("s_cmp_ge_u32 s2, 256")
    g("s_cbranch_scc1 L_end")
    g("s_load_dwordx4 s[4:7], s[0:1], 0")
    g("s_load_dwordx4 s[8:11], s[0:1], 16")
    if INSTR:
        g("s_memtime s[44:45]")
        g("s_memrealtime s[52:53]")
        g("s_load_dwordx2 s[56:57], s[0:1], 40")
    NPF = 0
    if PF:
        g("s_getpc_b64 s[42:43]")
        if PFW < 256:
            g(f"s_cmp_ge_u32 s2, {PFW}")
            g("s_cbranch_scc1 L_nopf")
        g(f"v_lshlrev_b32 v{T}, 4, v0")
        g(f"global_load_dwordx4 v[0+16:3+16], v{T}, s[42:43]")
        NPF = 1
        if PF > 1:
            g(f"v_add_u32 v{T+1}, 5120, v{T}")
            g(f"global_load_dwordx4 v[0+20:3+20], v{T+1}, s[42:43]")
            NPF = 2
        if PFW < 256: g.label("L_nopf")
    g(f"v_lshrrev_b32 v{T}, 6, v0")
    g(f"v_and_b32 v{T+1}, 63, v0")
    g(f"v_readfirstlane_b32 s{sWave}, v{T}")
    g(f"s_and_b32 s{sTmp}, s2, 7")
    g(f"s_lshr_b32 s{sTmp2}, s2, 5")
    g(f"s_lshl_b32 s{sTmp}, s{sTmp}, 3")
    g(f"s_add_u32 s{sTmp}, s{sTmp}, s{sTmp2}")
    g(f"s_lshl_b32 s{sTmp}, s{sTmp}, 17")
    g(f"v_and_b32 v{T}, 31, v{T+1}")
    g(f"v_lshrrev_b32 v{T+2}, 5, v{T+1}")
    g(f"v_lshlrev_b32 v{vQoff}, 6, v{T}")
    g(f"v_lshl_add_u32 v{vQoff}, v{T+2}, 4, v{vQoff}")
    g(f"s_cmp_eq_u32 s{sWave}, 4")
    g("s_cbranch_scc1 L_helper")
    g(f"s_bfe_u32 s{sTmp2}, s2, 0x20003")
    g(f"s_lshl_b32 s{sTmp2}, s{sTmp2}, 15")
    g(f"s_lshl_b32 s{sC}, s{sWave}, 13")
    g(f"s_add_u32 s{sTmp2}, s{sTmp2}, s{sC}")
    g(f"s_add_u32 s{sTmp2}, s{sTmp2}, s{sTmp}")
    g(f"s_mov_b32 s{sQ+2}, 8192")
    g(f"s_mov_b32 s{sQ+3}, 0x00020000")
    g("s_waitcnt lgkmcnt(0)")
    g(f"s_add_u32 s{sQ}, s4, s{sTmp2}")
    g(f"s_addc_u32 s{sQ+1}, s5, 0")
    def qload(js):
        for j in js:
            for h in range(2):
                off = j * 2048 + h * 32
                so = "0" if off < 4096 else f"s{sP}"
                g(f"buffer_load_dwordx4 {r(Q[j][h], 4)}, v{vQoff}, s[{sQ}:{sQ+3}], {so} offen offset:{off % 4096}{' nt' if QNT else ''}")
    qload((0, 1))
    if QD == 0:
        g(f"s_mov_b32 s{sP}, 4096")
        qload((2, 3))
    g("s_barrier")
    g("s_branch L_compute2")
    emit_helper()
    g.label("L_compute2")
    g(f"s_add_u32 s{sK}, s6, s{sTmp}")
    g(f"s_addc_u32 s{sK+1}, s7, 0")
    g(f"s_add_u32 s{sV}, s8, s{sTmp}")
    g(f"s_addc_u32 s{sV+1}, s9, 0")
    g(f"s_add_u32 s{sO}, s10, s{sTmp2}")
    g(f"s_addc_u32 s{sO+1}, s11, 0")
    for sr, n in ((sK, 131072), (sV, 131072), (sO, 8192)):
        g(f"s_mov_b32 s{sr+2}, {n}")
        g(f"s_mov_b32 s{sr+3}, 0x00020000")
    g(f"s_mov_b32 s{sSpin}, 0x40000")
    g(f"s_mov_b32 s{sP}, 4096")
    g(f"s_lshl_b32 s{sTmp}, s{sWave}, 8")
    g(f"s_add_u32 s{sTmp}, s{sTmp}, {PROG}")
    g(f"v_lshlrev_b32 v{vL16}, 4, v{T+1}")
    g(f"v_lshlrev_b32 v{vSy}, 2, v{T+1}")
    g(f"v_add_u32 v{vSy}, s{sTmp}, v{vSy}")
    g(f"v_mov_b32 v{vA}, v{vL16}")
    g(f"v_and_b32 v{T}, 15, v{T+1}")
    g(f"v_lshrrev_b32 v{T}, 2, v{T}")
    g(f"v_lshl_add_u32 v{T}, v{T+2}, 3, v{T}")
    g(f"v_lshlrev_b32 v{T}, 6, v{T}")
    g(f"v_lshrrev_b32 v{T+3}, 4, v{T+1}")
    g(f"v_and_b32 v{T+3}, 1, v{T+3}")
    g(f"v_lshl_add_u32 v{T}, v{T+3}, 5, v{T}")
    g(f"v_and_b32 v{T+3}, 3, v{T+1}")
    g(f"v_lshl_add_u32 v{T}, v{T+3}, 3, v{T}")
    g(f"v_add_u32 v{vT0}, {KB + FO}, v{T}")
    g(f"v_mov_b32 v{vT}, v{vT0}")
    g(f"v_lshrrev_b32 v{T+2}, 2, v{T+1}")
    g(f"v_and_b32 v{T+2}, 1, v{T+2}")
    g(f"v_cmp_eq_u32 vcc, 0, v{T+2}")
    g(f"v_mov_b32 v{T+3}, 0x3f803f80")
    g(f"v_mov_b32 v{IDX}, {U:#x}")
    g(f"v_cndmask_b32 v{ONES}, 0, v{T+3}, vcc")
    g(f"v_cndmask_b32 v{ONES+1}, 0, v{T+3}, vcc")
    g(f"v_cndmask_b32 v{ONES+2}, v{T+3}, 0, vcc")
    g(f"v_cndmask_b32 v{ONES+3}, v{T+3}, 0, vcc")
    for j in range(4):
        for i in range(0, 16, 2): g(f"v_pk_mov_b32 {r(O[j]+i,2)}, 0, 0")
        for i in range(0, 4, 2): g(f"v_pk_mov_b32 {r(Lr[j]+i,2)}, 0, 0")
    cbits = f32bits(1.4426950408889634 * 32 ** -0.5)
    sCC = 72 if INSTR else 46
    g(f"s_mov_b32 s{sCC}, 0x{cbits:08x}")
    g(f"s_mov_b32 s{sCC+1}, 0x{cbits:08x}")
    g(f"s_mov_b32 s{sBase}, 0")
    g(f"s_mov_b32 s{sNeed}, 1")
    g(f"s_mov_b32 s{sBad}, 0")
    if INSTR == 1: g("s_memtime s[60:61]")
    g(f"s_waitcnt vmcnt({0 if QD else 4})")
    if INSTR == 1: g("s_memtime s[62:63]")
    def qscale(js):
        for j in js:
            for h in range(2):
                for i in range(4):
                    x = Q[j][h] + i
                    t = T + 2 * (i % 2)
                    g(f"v_lshlrev_b32 v{t}, 16, v{x}")
                    g(f"v_and_b32 v{t+1}, 0xffff0000, v{x}")
                    g(f"v_pk_mul_f32 {r(t,2)}, {r(t,2)}, s[{sCC}:{sCC+1}]")
                    g(f"v_cvt_pk_bf16_f32 v{x}, v{t}, v{t+1}")
    g(f"ds_read_b32 v{vFl}, v{vL16}")
    if QD: qload((2, 3))
    if OT: g(f"buffer_load_dword v{CB[1]}, v{vQoff}, s[{sO}:{sO+3}], 0 offen")
    qscale((0, 1))
    slow = []
    def flagwait(name):
        g("s_waitcnt lgkmcnt(0)")
        g(f"v_readfirstlane_b32 s{sTmp}, v{vFl}")
        g("s_nop 0")
        g(f"s_cmp_ge_u32 s{sTmp}, s{sNeed}")
        g(f"s_cbranch_scc0 L_slow_{name}")
        g.label(f"L_ok_{name}")
        slow.append(name)
    flagwait("k0")
    if INSTR == 1:
        g("s_memtime s[64:65]")
        g("s_waitcnt lgkmcnt(0)")
    inloop = [False]
    def kread1(kt, h):
        if (AB & 16) and inloop[0]: return
        g(f"ds_read_b128 {r(K[kt%2][h],4)}, v{vA} offset:{FO + (kt % CK) * 2048 + 1024*h}")
    def vread1(kt, i):
        if (AB & 16) and inloop[0]: return
        g(f"ds_read_b64_tr_b16 {r(V[kt%2][i//2] + 2*(i%2),2)}, v{vT} offset:{(kt % CK) * 2048 + (0, 256, 1024, 1280)[i]}")
    def qk(dst, kbuf, j, cin):
        g(f"v_mfma_f32_32x32x16_bf16 {r(dst,16)}, {r(K[kbuf][0],4)}, {r(Q[j][0],4)}, {cin}")
        g(f"v_mfma_f32_32x32x16_bf16 {r(dst,16)}, {r(K[kbuf][1],4)}, {r(Q[j][1],4)}, {r(dst,16)}")
    def pairmax(sa, sb_, cb):
        m = T
        g(f"v_max3_f32 v{m}, v{sa}, v{sa+1}, v{sa+2}")
        g(f"v_max3_f32 v{m+1}, v{sa+3}, v{sa+4}, v{sa+5}")
        g(f"v_max3_f32 v{m+2}, v{sa+6}, v{sa+7}, v{sa+8}")
        g(f"v_max3_f32 v{m+3}, v{sa+9}, v{sa+10}, v{sa+11}")
        g(f"v_max3_f32 v{m}, v{m}, v{sa+12}, v{sa+13}")
        g(f"v_max3_f32 v{m+1}, v{m+1}, v{sa+14}, v{sa+15}")
        for i in range(8):
            g(f"v_max3_f32 v{m+i%4}, v{m+i%4}, v{sb_+2*i}, v{sb_+2*i+1}")
        g(f"v_max3_f32 v{m}, v{m}, v{m+2}, v{m+3}")
        g(f"v_max_f32 v{m}, v{m}, v{m+1}")
        finish_max(m, cb)
    def finish_max(m, cb):
        g(f"v_mov_b32 v{m+1}, v{m}")
        g("s_nop 1")
        g(f"v_permlane32_swap_b32 v{m}, v{m+1}")
        g("s_nop 1")
        g(f"v_max_f32 v{m}, v{m}, v{m+1}")
        g(f"v_sub_f32 v{CB[cb]}, 0, v{m}")
        g(f"v_sub_f32 v{CB[cb]+1}, 0, v{m}")
        for i in range(2, 16, 2): g(f"v_pk_mov_b32 {r(CB[cb]+i,2)}, {r(CB[cb],2)}, {r(CB[cb],2)}")
    kread1(0, 0); kread1(0, 1)
    for i in range(4): vread1(0, i)
    g("s_waitcnt lgkmcnt(4)")
    qk(S[0], 0, 0, "0"); qk(S[1], 0, 1, "0")
    g(f"ds_read_b32 v{vFl}, v{vL16}")
    g(f"s_mov_b32 s{sNeed}, 2")
    g("s_nop 7")
    pairmax(S[0], S[1], 0)
    g("s_nop 1")
    qk(S[0], 0, 0, r(CB[0], 16))
    flagwait("k1")
    kread1(1, 0); kread1(1, 1)
    g(f"ds_read_b32 v{vFl}, v{vL16}")
    if INSTR:
        g("s_memtime s[46:47]")
        g("s_waitcnt lgkmcnt(0)")
    g("s_nop 7")
    g("s_nop 1")
    def pv(j, vb, half, sbuf):
        if ABL == 3:
            g(f"v_mfma_f32_32x32x16_bf16 {r(O[j],16)}, {r(V[vb][half],4)}, {r(Q[j][half], 4)}, {r(O[j],16)}"); g("s_nop 0"); g("s_nop 0"); return
        if ABL == 4 or (AB & 2):
            g("s_nop 2"); return
        g(f"v_smfmac_f32_32x32x32_bf16 {r(O[j],16)}, {r(V[vb][half],4)}, {r(sbuf + 8*half, 8)}, v{IDX}")
    def ls(j, half, sbuf):
        if ABL == 1 or (AB & 1):
            g("s_nop 2"); return
        g(f"v_smfmac_f32_16x16x64_bf16 {r(Lr[j],4)}, {r(ONES,4)}, {r(sbuf + 8*half, 8)}, v{IDX}")
    def region(name, order, prev_j, next_j, has_next, hooks=None, extra=None, skip_last2=False, lead2=False):
        NQ = len(order)
        NST = NQ * CK
        sched = {}
        def at(kt, jj, slot, fn): sched.setdefault((kt * NQ + jj, slot), []).append(fn)
        kj = 2 if NQ == 4 else 1
        for kt in range(CK):
            at(kt, 0, "pv2", lambda: g("s_waitcnt lgkmcnt(0)"))
            if kt + 1 < CK or has_next:
                if kt + 1 == CK: at(kt, 0, "qkb", lambda: g(f"v_add_u32 v{vT}, s{sBase}, v{vT0}"))
                if NQ == 4:
                    for i, (jj, sl) in enumerate(((0, "l2"), (0, "l1"), (1, "l2"), (1, "l1"))):
                        at(kt, jj, sl, lambda kt=kt, i=i: vread1(kt + 1, i))
                else:
                    for i, sl in enumerate(("l2", "l2", "l1", "l1")):
                        at(kt, 0, sl, lambda kt=kt, i=i: vread1(kt + 1, i))
            if kt + 2 < CK or has_next:
                if kt + 2 == CK: at(kt, kj, "qkb", lambda: g(f"v_add_u32 v{vA}, s{sBase}, v{vL16}"))
                at(kt, kj, "l2", lambda kt=kt: kread1(kt + 2, 0))
                at(kt, kj, "l1", lambda kt=kt: kread1(kt + 2, 1))
        if has_next and NQ == 4:
            at(CK - 3, 3, "l2", lambda: g(f"ds_read_b32 v{vFl}, v{vL16}"))
            at(CK - 2, 1, "qka", lambda: g(f"s_add_u32 s{sNeed}, s{sNeed}, 4"))
            at(CK - 2, 1, "qkb", lambda: g(f"s_add_u32 s{sBase}, s{sBase}, {CH}"))
            at(CK - 2, 1, "qkb", lambda: g(f"v_readfirstlane_b32 s{sTmp}, v{vFl}"))
            at(CK - 2, 1, "pv2", lambda: g(f"s_and_b32 s{sBase}, s{sBase}, {RING-1}"))
            def chk():
                g(f"s_cmp_ge_u32 s{sTmp}, s{sNeed}")
                g(f"s_cbranch_scc0 L_slow_{name}")
                g.label(f"L_ok_{name}")
                slow.append(name)
            at(CK - 2, 1, "pv1", chk)
            at(CK - 1, 3, "l2", lambda: g(f"ds_add_u32 v{vSy}, v{IDX}"))
        if has_next and NQ == 2:
            for kt in range(CK):
                need = kt + 3 if kt < CK - 1 else 2 * CK
                if kt > 0: at(kt - 1, 1, "pv1", lambda: g(f"ds_read_b32 v{vFl}, v{vL16}"))
                def chk(kt=kt, need=need):
                    if INSTR == 3 and kt == CK - 1: g("s_memtime s[60:61]")
                    g(f"s_mov_b32 s{sNeed}, {need}")
                    g(f"v_readfirstlane_b32 s{sTmp}, v{vFl}")
                    if kt == CK - 2: g(f"s_mov_b32 s{sBase}, {CH}")
                    else: g("s_nop 0")
                    g(f"s_cmp_ge_u32 s{sTmp}, s{sNeed}")
                    g(f"s_cbranch_scc0 L_slow_{name}{kt}")
                    g.label(f"L_ok_{name}{kt}")
                    slow.append(f"{name}{kt}")
                at(kt, 0, "pv1", chk)
            at(CK - 1, 1, "pv1", lambda: g(f"ds_add_u32 v{vSy}, v{IDX}"))
        if extra:
            for k, fns in extra.items(): sched.setdefault(k, []).extend(fns)
        for n in range(NST):
            kt, jj = n // NQ, n % NQ
            j = order[jj]
            sb = S[n % 4]; sprev = S[(n - 1) % 4]; snext = S[(n + 1) % 4]
            if n == 0: prev = None if prev_j is None else (CK - 1, prev_j)
            else: prev = ((n - 1) // NQ, order[(n - 1) % NQ])
            if n == NST - 1: nxt = None if next_j is None else (CK, next_j)
            else: nxt = ((n + 1) // NQ, order[(n + 1) % NQ])
            e = iter(range(16))
            def ex(k):
                for _ in range(k):
                    i = next(e); g(f"v_exp_f32 v{sb+i}, v{sb+i}" if (ABL != 5 and not (AB & 4)) else "v_nop\n    v_nop")
            def slot(nm):
                for fn in sched.get((n, nm), []): fn()
            g.c(f"---- {name} step {n}: kt={kt} j={j}")
            if n == 0 and lead2:
                g(f"v_exp_f32 v{sprev+14}, v{sprev+14}")
                g(f"v_exp_f32 v{sprev+15}, v{sprev+15}")
            if hooks and (n, "top") in hooks: hooks[(n, "top")]()
            if nxt and (AB & 8): g("s_nop 1")
            elif nxt and ABL == 2: g(f"v_mfma_f32_32x32x16_bf16 {r(snext,16)}, {r(K[nxt[0]%2][0],4)}, {r(Q[nxt[1]][0],4)}, 0")
            elif nxt: g(f"v_mfma_f32_32x32x16_bf16 {r(snext,16)}, {r(K[nxt[0]%2][0],4)}, {r(Q[nxt[1]][0],4)}, {r(CB[nxt[1]//2],16)}")
            slot("qka")
            ex(3)
            if nxt and (AB & 8): g("s_nop 1")
            elif nxt: g(f"v_mfma_f32_32x32x16_bf16 {r(snext,16)}, {r(K[nxt[0]%2][1],4)}, {r(Q[nxt[1]][1],4)}, {r(snext,16)}")
            slot("qkb")
            ex(3)
            if prev: pv(prev[1], prev[0] % 2, 1, sprev)
            slot("pv2")
            ex(3)
            if prev: ls(prev[1], 1, sprev)
            slot("l2")
            ex(2)
            pv(j, kt % 2, 0, sb)
            slot("pv1")
            ex(3)
            ls(j, 0, sb)
            slot("l1")
            if not (skip_last2 and n == NST - 1): ex(2)
            if hooks and (n, "end") in hooks: hooks[(n, "end")]()
    def q23():
        g.c("Q tiles 2,3: scale, stand-in max from chunk 1 tile 0")
        if INSTR == 3: g("s_memtime s[62:63]")
        g("s_waitcnt vmcnt(0)")
        if INSTR == 3: g("s_memtime s[64:65]")
        qscale((2, 3))
        g("s_nop 1")
        qk(S[0], 0, 2, "0"); qk(S[1], 0, 3, "0")
        g("s_nop 7")
        g("s_nop 1")
        pairmax(S[0], S[1], 1)
        g("s_nop 1")
    region("head", (0, 1), None, 2, True, hooks={(2 * CK - 1, "top"): q23},
           extra={(2 * CK - 1, "pv1"): [lambda: g(f"s_mov_b32 s{sIt}, 1")]}, skip_last2=True)
    if INSTR == 2: g("s_memtime s[60:61]")
    g.L.append(".p2align 6")
    g.label("L_loop")
    inloop[0] = True
    for u in range(UNR):
        ex_ = None
        if u == UNR - 1:
            ex_ = {(4 * CK - 1, "pv1"): [lambda: g(f"s_add_u32 s{sIt}, s{sIt}, {UNR}"), lambda: g(f"s_cmp_lt_u32 s{sIt}, {NCH}")]}
        region(f"body{u}", (2, 3, 0, 1), 1, 2, True, extra=ex_, skip_last2=True, lead2=True)
    if INSTR == 2:
        g("s_cbranch_scc0 L_exit")
        g(f"s_cmp_eq_u32 s{sIt}, {1 + UNR}")
        g("s_cbranch_scc0 L_loop")
        g("s_memtime s[62:63]")
        g("s_branch L_loop")
        g.label("L_exit")
        g("s_memtime s[64:65]")
    else:
        g("s_cbranch_scc1 L_loop")
    def check_store(js, bit, P, X):
        final_store(js, P, None)
        a, b = js
        for x, j in enumerate(js):
            for i in range(0, 16, 2):
                t = X + (i // 2) % 4
                if x == 0 and i < 8: g(f"v_maximum3_f32 v{t}, abs(v{O[j]+i}), abs(v{O[j]+i+1}), abs(v{O[j]+i+1})")
                else: g(f"v_maximum3_f32 v{t}, abs(v{O[j]+i}), abs(v{O[j]+i+1}), v{t}")
        g(f"v_maximum3_f32 v{X}, v{X}, v{X+1}, v{X+2}")
        g(f"v_maximum3_f32 v{X+4}, v{Lr[a]}, v{Lr[b]}, v{Lr[b]}")
        g(f"v_minimum3_f32 v{X+5}, v{Lr[a]}, v{Lr[b]}, v{Lr[b]}")
        g(f"v_maximum3_f32 v{X}, v{X}, v{X+3}, v{X+3}")
        g(f"v_mov_b32 v{X+1}, 0x5f800000")
        g(f"v_mov_b32 v{X+2}, 0x{(127 - LO) << 23:08x}")
        g(f"v_mov_b32 v{X+3}, 0x7f800000")
        g(f"v_cmp_nlt_f32 s[38:39], v{X+4}, v{X+1}")
        g(f"v_cmp_nlt_f32 vcc, v{X}, v{X+3}")
        g(f"v_cmp_nge_f32 s[42:43], v{X+5}, v{X+2}")
        g("s_nop 1")
        g("s_or_b64 vcc, vcc, s[38:39]")
        g("s_or_b64 vcc, vcc, s[42:43]")
        g("s_cmp_lg_u64 vcc, 0")
        g(f"s_cselect_b32 s{sTmp}, {bit}, 0")
        g(f"s_or_b32 s{sBad}, s{sBad}, s{sTmp}")
    def final_store(js, P, soff):
        a, b = js
        for x, j in enumerate(js):
            g(f"v_rcp_f32 v{T+2*x}, v{Lr[j]}")
            g(f"v_rcp_f32 v{T+2*x+1}, v{Lr[j]+1}")
            g("s_nop 0")
            for i in range(0, 16, 2): g(f"v_pk_mul_f32 {r(O[j]+i,2)}, {r(O[j]+i,2)}, {r(T+2*x,2)}")
            PP = P + 8 * x
            for gq in range(4):
                g(f"v_cvt_pk_bf16_f32 v{PP+2*gq}, v{O[j]+4*gq}, v{O[j]+4*gq+1}")
                g(f"v_cvt_pk_bf16_f32 v{PP+2*gq+1}, v{O[j]+4*gq+2}, v{O[j]+4*gq+3}")
            g("s_nop 1")
            for pr in range(2):
                bb = PP + 4 * pr
                g(f"v_permlane32_swap_b32 v{bb}, v{bb+2}")
                g(f"v_permlane32_swap_b32 v{bb+1}, v{bb+3}")
            g("s_nop 1")
            if FL:
                for i in range(4): g(f"v_permlane16_swap_b32 v{PP+i}, v{PP+4+i}")
                g("s_nop 0")
            for pr in range(2):
                va = vFl if FL else vQoff
                po = pr * 1024 if FL else pr * 32
                if soff is None:
                    off = j * 2048 + po
                    so = "0" if off < 4096 else f"s{sP}"
                    g(f"buffer_store_dwordx4 {r(PP+4*pr,4)}, v{va}, s[{sO}:{sO+3}], {so} offen offset:{off % 4096}{STF}")
                else:
                    g(f"buffer_store_dwordx4 {r(PP+4*pr,4)}, v{va}, s[{sO}:{sO+3}], s{soff} offen offset:{x*2048 + po}")
    def store_addr():
        g(f"v_and_b32 v{vFl}, 0xf0, v{vL16}")
        g(f"v_lshlrev_b32 v{vFl}, 2, v{vFl}")
        g(f"v_and_b32 v{T}, 0x100, v{vL16}")
        g(f"v_lshrrev_b32 v{T}, 3, v{T}")
        g(f"v_or_b32 v{vFl}, v{vFl}, v{T}")
        g(f"v_and_b32 v{T}, 0x200, v{vL16}")
        g(f"v_lshrrev_b32 v{T}, 5, v{T}")
        g(f"v_or_b32 v{vFl}, v{vFl}, v{T}")
    def first_pair():
        if FL: store_addr()
        check_store((0, 1), 1, Q[0][0], CB[0])
    region("tail", (2, 3), 1, None, False, hooks={(1, "end"): first_pair}, lead2=True)
    g("s_nop 1")
    pv(3, (CK - 1) % 2, 1, S[3]); ls(3, 1, S[3])
    if INSTR: g("s_memtime s[48:49]")
    check_store((2, 3), 2, Q[2][0], CB[0])
    g(f"s_cmp_lg_u32 s{sBad}, 0")
    if not ABL: g("s_cbranch_scc1 L_fallback")
    g.label("L_done")
    if INSTR:
        g("s_waitcnt vmcnt(0)")
        g("s_memtime s[50:51]")
        g("s_memrealtime s[54:55]")
        g("s_waitcnt lgkmcnt(0)")
        g("s_mov_b32 s68, s56")
        g("s_mov_b32 s69, s57")
        g("s_mov_b32 s70, 0x100000")
        g("s_mov_b32 s71, 0x00020000")
        g(f"s_lshl_b32 s{sTmp}, s2, 2")
        g(f"s_add_u32 s{sTmp}, s{sTmp}, s{sWave}")
        g(f"s_lshl_b32 s{sTmp}, s{sTmp}, 6")
        g("s_getreg_b32 s58, hwreg(HW_REG_XCC_ID)")
        g("s_getreg_b32 s59, hwreg(HW_REG_HW_ID)")
        for i, sr in enumerate((44, 46, 48, 50, 52, 54, 58, 59, 60, 60, 62, 64)):
            g(f"v_mov_b32 v{40+i}, s{sr}")
        g(f"v_mov_b32 v39, s{sTmp}")
        g("s_mov_b64 exec, 1")
        g("buffer_store_dwordx4 v[40:43], v39, s[68:71], 0 offen")
        g("buffer_store_dwordx4 v[44:47], v39, s[68:71], 0 offen offset:16")
        g("buffer_store_dwordx4 v[48:51], v39, s[68:71], 0 offen offset:32")
        g("s_waitcnt vmcnt(0)")
    g("s_endpgm")
    for name in slow:
        g.label(f"L_slow_{name}")
        g(f"s_sub_u32 s{sSpin}, s{sSpin}, 1")
        g("s_cbranch_scc1 L_end")
        g("s_sleep 1")
        g(f"ds_read_b32 v{vFl}, v{vL16}")
        g("s_waitcnt lgkmcnt(0)")
        g(f"v_readfirstlane_b32 s{sTmp}, v{vFl}")
        g("s_nop 0")
        g(f"s_cmp_ge_u32 s{sTmp}, s{sNeed}")
        g(f"s_cbranch_scc0 L_slow_{name}")
        g(f"s_branch L_ok_{name}")
    g.label("L_fallback")
    g("s_waitcnt vmcnt(0) lgkmcnt(0)")
    g(f"s_lshl_b32 s{sBase}, s{sWave}, 11")
    g(f"s_add_u32 s{sBase}, s{sBase}, {FBL}")
    g(f"s_sub_u32 s{sTmp}, s{sBase}, {KB + FO}")
    g(f"v_add_u32 v{vT}, s{sTmp}, v{vT0}")
    g(f"s_mov_b32 s{sP}, 0")
    g.label("L_fb_pair")
    g(f"s_and_b32 s{sTmp}, s{sBad}, 1")
    g("s_cbranch_scc0 L_fb_next")
    for j in range(2):
        for h in range(2):
            g(f"buffer_load_dwordx4 {r(Q[j][h], 4)}, v{vQoff}, s[{sQ}:{sQ+3}], s{sP} offen offset:{j*2048 + h*32}")
    g("s_waitcnt vmcnt(0)")
    qscale((0, 1))
    M0r, M1r = S[2], S[2] + 4
    g(f"v_mov_b32 v{M0r}, 0xff800000")
    g(f"v_mov_b32 v{M1r}, 0xff800000")
    g(f"s_mov_b32 s{sGoff}, 0")
    g.label("L_fb_max")
    g(f"buffer_load_dwordx4 {r(K[0][0],4)}, v{vQoff}, s[{sK}:{sK+3}], s{sGoff} offen")
    g(f"buffer_load_dwordx4 {r(K[0][1],4)}, v{vQoff}, s[{sK}:{sK+3}], s{sGoff} offen offset:32")
    g("s_waitcnt vmcnt(0)")
    qk(S[0], 0, 0, "0"); qk(S[1], 0, 1, "0")
    g("s_nop 15")
    for j, m in ((0, M0r), (1, M1r)):
        for i in range(0, 16, 2):
            g(f"v_max3_f32 v{m}, v{m}, v{S[j]+i}, v{S[j]+i+1}")
    g(f"s_add_u32 s{sGoff}, s{sGoff}, 2048")
    g(f"s_cmp_lt_u32 s{sGoff}, 131072")
    g("s_cbranch_scc1 L_fb_max")
    for j, m in ((0, M0r), (1, M1r)):
        finish_max(m, j)
        for i in range(16): g(f"v_mov_b32 v{O[j]+i}, 0")
        for i in range(4): g(f"v_mov_b32 v{Lr[j]+i}, 0")
    g(f"s_mov_b32 s{sGoff}, 0")
    g.label("L_fb_loop")
    g(f"buffer_load_dwordx4 {r(K[0][0],4)}, v{vQoff}, s[{sK}:{sK+3}], s{sGoff} offen")
    g(f"buffer_load_dwordx4 {r(K[0][1],4)}, v{vQoff}, s[{sK}:{sK+3}], s{sGoff} offen offset:32")
    g(f"s_mov_b32 m0, s{sBase}")
    g("s_nop 0")
    g(f"buffer_load_dwordx4 v{vL16}, s[{sV}:{sV+3}], s{sGoff} offen lds")
    g(f"buffer_load_dwordx4 v{vL16}, s[{sV}:{sV+3}], s{sGoff} offen offset:1024 lds")
    g("s_waitcnt vmcnt(0)")
    for i in range(4): vread1(0, i)
    qk(S[0], 0, 0, r(CB[0], 16)); qk(S[1], 0, 1, r(CB[1], 16))
    g("s_nop 15")
    for j in range(2):
        for i in range(16): g(f"v_exp_f32 v{S[j]+i}, v{S[j]+i}")
    g("s_waitcnt lgkmcnt(0)")
    g("s_nop 1")
    for j in range(2):
        pv(j, 0, 0, S[j]); pv(j, 0, 1, S[j]); ls(j, 0, S[j]); ls(j, 1, S[j])
    g(f"s_add_u32 s{sGoff}, s{sGoff}, 2048")
    g(f"s_cmp_lt_u32 s{sGoff}, 131072")
    g("s_cbranch_scc1 L_fb_loop")
    g("s_nop 15")
    g("s_nop 3")
    final_store((0, 1), S[2], sP)
    g("s_waitcnt vmcnt(0)")
    g.label("L_fb_next")
    g(f"s_lshr_b32 s{sBad}, s{sBad}, 1")
    g(f"s_add_u32 s{sP}, s{sP}, 4096")
    g(f"s_cmp_lt_u32 s{sP}, 8192")
    g("s_cbranch_scc1 L_fb_pair")
    g("s_branch L_done")
    g.label("L_end")
    g("s_endpgm")
    hdr = open("cdna_kernels/" + NAME + ".s.ref").read().split("; Override launch")[0]
    out = hdr + f"""; Override launch geometry by editing the next line (default: block=256,
; grid=ceil(out_elems/256), lds=0). Harness parses it; keep it on one line.
; @launch grid=(256,1,1) block=(320,1,1) lds={LDS}
.amdgcn_target "amdgcn-amd-amdhsa--gfx950"
.text
.globl {NAME}_kernel
.p2align 8
.type {NAME}_kernel,@function
{NAME}_kernel:
{g.text()}
.section .rodata,"a"
.p2align 6
.amdhsa_kernel {NAME}_kernel
  .amdhsa_next_free_vgpr 256
  .amdhsa_next_free_sgpr {80 if INSTR else 48}
  .amdhsa_accum_offset 256
  .amdhsa_group_segment_fixed_size 0
  .amdhsa_kernarg_size 48
  .amdhsa_user_sgpr_count 2
  .amdhsa_user_sgpr_kernarg_segment_ptr 1
  .amdhsa_system_sgpr_workgroup_id_x 1
.end_amdhsa_kernel
"""
    return out

if __name__ == "__main__":
    out = sys.argv[1] if len(sys.argv) > 1 else f"cdna_kernels/{NAME}.s"
    kw = dict(a.split("=") for a in sys.argv[2:])
    kw = {k: int(v) for k, v in kw.items()}
    open(out, "w").write(gen(**kw))
```

```python
import sys, struct

NAME = "standalone__fused_io_aware_attn__prompt"
def f32bits(x): return struct.unpack("<I", struct.pack("<f", x))[0]

class Gen:
    def __init__(s): s.L = []
    def __call__(s, txt): s.L.append("    " + txt)
    def label(s, l): s.L.append(l + ":")
    def c(s, t): s.L.append("    ; " + t)
    def text(s): return "\n".join(s.L)

def gen(NS=8, R=4, INSTR=0, SLP=12, UNR=1, LO=64, ABL=0, PF=2, W=8, B0=2, ST=1, OT=0, FL=1, PFW=256, QNT=1, KNT=0, AB=0, QD=1, GROW=1, PFE=0, SPL=1, QP=4, DK=0):
    if AB: ABL = 99
    STF = ['', ' sc1', ' sc0 sc1', ' nt', ' sc1 nt', ' sc0 sc1 nt'][ST]
    g = Gen()
    CK = 4
    D = 2
    KB = CK * 2048
    CH = 2 * KB
    NCH = 64 // CK
    NCHT = NCH + 1
    RING = NS * CH
    FO = 2048
    READY = 0
    PROG = 1024
    FBL = RING + 2048
    LDS = RING + 2048 + 8192
    U = 0xdddd
    assert R >= D + 1 and R <= NS - 1 and (NCH - 1) % UNR == 0
    S = [0, 16, 32, 48]
    CB = [64, 80]
    O = [96, 112, 128, 144]
    Q = [[160 + 8 * j + 4 * h for h in range(2)] for j in range(4)]
    K = [[192 + 8 * b + 4 * h for h in range(2)] for b in range(2)]
    V = [[208 + 8 * b + 4 * h for h in range(2)] for b in range(2)]
    Lr = [224 + 4 * j for j in range(4)]
    ONES, IDX = 240, 244
    vA, vL16, vSy, vFl, vQoff, vT, vT0 = 245, 246, 247, 248, 249, 250, 251
    T = 252
    def r(b, n): return f"v[{b}:{b+n-1}]"
    sK, sV, sQ, sO = 12, 16, 20, 24
    sWave, sHead, sQB = 28, 29, 30
    sGoff, sBase, sIt, sTmp, sC = 31, 32, 33, 34, 35
    sTmp2, sNeed, sBad, sP, sSpin = 36, 37, 40, 41, 3
    def emit_helper():
        NT = NCHT * CK
        P1 = 4 * (R + 1)
        hZ, hPa, hP, hOne, hOne2, hOne3 = 8, 12, 13, 14, 5, 6
        sX, sM, sG = 32, 33, 35
        knt = ' nt' if KNT else ''
        def call(): g("s_call_b64 s[38:39], L_issue")
        def pub(reg): g(f"ds_add_u32 v{vL16}, v{reg}")
        g.label("L_issue")
        g(f"s_and_b32 s{sM}, s{sX}, {4*(NS-1)}")
        g(f"s_lshl_b32 s{sM}, s{sM}, {CH.bit_length()-1-2}")
        g(f"s_and_b32 s{sTmp}, s{sX}, 3")
        g(f"s_lshl_b32 s{sTmp}, s{sTmp}, 11")
        g(f"s_add_u32 s{sM}, s{sM}, s{sTmp}")
        g(f"s_add_u32 s{sM}, s{sM}, {FO}")
        g(f"s_mov_b32 m0, s{sM}")
        g(f"s_and_b32 s{sG}, s{sX}, 63")
        g(f"s_lshl_b32 s{sG}, s{sG}, 11")
        g(f"buffer_load_dwordx4 v{vQoff}, s[{sK}:{sK+3}], s{sG} offen{knt} lds")
        g(f"s_add_u32 s{sTmp}, s{sM}, 1024")
        g(f"s_mov_b32 m0, s{sTmp}")
        g(f"s_add_u32 s{sTmp}, s{sM}, {KB}")
        g(f"buffer_load_dwordx4 v{vFl}, s[{sK}:{sK+3}], s{sG} offen{knt} lds")
        g(f"s_mov_b32 m0, s{sTmp}")
        g(f"s_add_u32 s{sX}, s{sX}, 1")
        g(f"buffer_load_dwordx4 v{vL16}, s[{sV}:{sV+3}], s{sG} offen{knt} lds")
        g(f"buffer_load_dwordx4 v{vL16}, s[{sV}:{sV+3}], s{sG} offen offset:1024{knt} lds")
        g("s_setpc_b64 s[38:39]")
        g.label("L_helper")
        g(f"v_lshlrev_b32 v{vL16}, 4, v{T+1}")
        g(f"v_add_u32 v{vFl}, 32, v{vQoff}")
        for sr, n in ((sK, 131072), (sV, 131072)):
            g(f"s_mov_b32 s{sr+2}, {n}")
            g(f"s_mov_b32 s{sr+3}, 0x00020000")
        g(f"s_mov_b32 s{sX}, 0")
        for i in range(4): g(f"v_mov_b32 v{hZ+i}, 0")
        g("s_waitcnt lgkmcnt(0)")
        g(f"s_add_u32 s{sK}, s6, s{sTmp}")
        g(f"s_addc_u32 s{sK+1}, s7, 0")
        g(f"s_add_u32 s{sV}, s8, s{sTmp}")
        g(f"s_addc_u32 s{sV+1}, s9, 0")
        call()
        g(f"ds_write_b128 v{vL16}, {r(hZ,4)}")
        g(f"ds_write_b128 v{vL16}, {r(hZ,4)} offset:1024")
        call()
        g("s_waitcnt lgkmcnt(0)")
        g("s_barrier")
        W0 = 4 if GROW else W
        for _ in range(W0 - 2): call()
        g(f"v_and_b32 v{hP}, 3, v{T+1}")
        g(f"v_lshlrev_b32 v{hPa}, 8, v{hP}")
        g(f"v_mov_b32 v{hOne}, 1")
        g(f"v_mov_b32 v{hOne2}, {W-1}")
        g(f"v_mov_b32 v{hOne3}, 4")
        g(f"s_mov_b32 s{sSpin}, 0x40000")
        for w in range(W0, W):
            g(f"s_waitcnt vmcnt({4*(w-1)})")
            pub(hOne)
            call(); call()
        g.label("L_hph1")
        g(f"s_waitcnt vmcnt({4*(W-1)})")
        pub(hOne)
        g(f"s_cmp_lt_u32 s{sX}, {P1}")
        g("s_cbranch_scc0 L_hdrain")
        call()
        g("s_branch L_hph1")
        g.label("L_hdrain")
        g("s_waitcnt vmcnt(0)")
        pub(hOne2)
        if OT == 2:
            g(f"s_and_b32 s{sTmp}, s2, 7")
            g(f"s_lshr_b32 s{sTmp2}, s2, 5")
            g(f"s_lshl_b32 s{sTmp}, s{sTmp}, 3")
            g(f"s_add_u32 s{sTmp}, s{sTmp}, s{sTmp2}")
            g(f"s_lshl_b32 s{sTmp}, s{sTmp}, 17")
            g(f"s_add_u32 s{sO}, s10, s{sTmp}")
            g(f"s_addc_u32 s{sO+1}, s11, 0")
            g(f"s_mov_b32 s{sO+2}, 131072")
            g(f"s_mov_b32 s{sO+3}, 0x00020000")
            g(f"buffer_load_dword v30, v{vL16}, s[{sO}:{sO+3}], 0 offen")
        g.label("L_hchunk")
        g(f"s_lshr_b32 s{sTmp2}, s{sX}, 2")
        g(f"s_sub_u32 s{sTmp2}, s{sTmp2}, {R}")
        g(f"s_mul_i32 s{sTmp2}, s{sTmp2}, {U}")
        g.label("L_hpoll")
        g(f"ds_read_b32 v{hP}, v{hPa} offset:{PROG}")
        g("s_waitcnt lgkmcnt(0)")
        g("s_setprio 3")
        g(f"v_cmp_gt_u32 vcc, s{sTmp2}, v{hP}")
        g("s_setprio 0")
        g("s_nop 0")
        g("s_cmp_eq_u64 vcc, 0")
        g("s_cbranch_scc1 L_hgo")
        g(f"s_sleep {SLP}")
        g(f"s_sub_u32 s{sSpin}, s{sSpin}, 1")
        g("s_cbranch_scc0 L_hpoll")
        g("s_endpgm")
        g.label("L_hgo")
        for _ in range(4): call()
        g("s_waitcnt vmcnt(0)")
        pub(hOne3)
        g(f"s_cmp_lt_u32 s{sX}, {NT}")
        g("s_cbranch_scc1 L_hchunk")
        g("s_waitcnt lgkmcnt(0)")
        g("s_endpgm")
    if PFE:
        g("s_load_dwordx4 s[4:7], s[0:1], 0")
        g("s_load_dwordx4 s[8:11], s[0:1], 16")
        g("s_getpc_b64 s[42:43]")
        g(f"v_lshlrev_b32 v{T}, 4, v0")
        g(f"global_load_dwordx4 v[16:19], v{T}, s[42:43]")
        g(f"v_add_u32 v{T+1}, 5120, v{T}")
        g(f"global_load_dwordx4 v[20:23], v{T+1}, s[42:43]")
        PF = 0
    g("s_cmp_ge_u32 s2, 256")
    g("s_cbranch_scc1 L_end")
    if not PFE:
        g("s_load_dwordx4 s[4:7], s[0:1], 0")
        g("s_load_dwordx4 s[8:11], s[0:1], 16")
    if INSTR:
        g("s_memtime s[44:45]")
        g("s_memrealtime s[52:53]")
        g("s_load_dwordx2 s[56:57], s[0:1], 40")
    NPF = 0
    if PF:
        g("s_getpc_b64 s[42:43]")
        if PFW < 256:
            g(f"s_cmp_ge_u32 s2, {PFW}")
            g("s_cbranch_scc1 L_nopf")
        g(f"v_lshlrev_b32 v{T}, 4, v0")
        g(f"global_load_dwordx4 v[0+16:3+16], v{T}, s[42:43]")
        NPF = 1
        if PF > 1:
            g(f"v_add_u32 v{T+1}, 5120, v{T}")
            g(f"global_load_dwordx4 v[0+20:3+20], v{T+1}, s[42:43]")
            NPF = 2
        if PFW < 256: g.label("L_nopf")
    g(f"v_lshrrev_b32 v{T}, 6, v0")
    g(f"v_and_b32 v{T+1}, 63, v0")
    g(f"v_readfirstlane_b32 s{sWave}, v{T}")
    g(f"s_and_b32 s{sTmp}, s2, 7")
    g(f"s_lshr_b32 s{sTmp2}, s2, 5")
    g(f"s_lshl_b32 s{sTmp}, s{sTmp}, 3")
    g(f"s_add_u32 s{sTmp}, s{sTmp}, s{sTmp2}")
    g(f"s_lshl_b32 s{sTmp}, s{sTmp}, 17")
    g(f"v_and_b32 v{T}, 31, v{T+1}")
    g(f"v_lshrrev_b32 v{T+2}, 5, v{T+1}")
    g(f"v_lshlrev_b32 v{vQoff}, 6, v{T}")
    g(f"v_lshl_add_u32 v{vQoff}, v{T+2}, 4, v{vQoff}")
    g(f"s_cmp_eq_u32 s{sWave}, 4")
    g("s_cbranch_scc1 L_helper")
    g(f"s_bfe_u32 s{sTmp2}, s2, 0x20003")
    g(f"s_lshl_b32 s{sTmp2}, s{sTmp2}, 15")
    g(f"s_lshl_b32 s{sC}, s{sWave}, 13")
    g(f"s_add_u32 s{sTmp2}, s{sTmp2}, s{sC}")
    g(f"s_add_u32 s{sTmp2}, s{sTmp2}, s{sTmp}")
    g(f"s_mov_b32 s{sQ+2}, 8192")
    g(f"s_mov_b32 s{sQ+3}, 0x00020000")
    g("s_waitcnt lgkmcnt(0)")
    g(f"s_add_u32 s{sQ}, s4, s{sTmp2}")
    g(f"s_addc_u32 s{sQ+1}, s5, 0")
    def qload(js):
        for j in js:
            for h in range(2):
                off = j * 2048 + h * 32
                so = "0" if off < 4096 else f"s{sP}"
                g(f"buffer_load_dwordx4 {r(Q[j][h], 4)}, v{vQoff}, s[{sQ}:{sQ+3}], {so} offen offset:{off % 4096}{' nt' if QNT else ''}")
    if DK:
        g(f"s_add_u32 s{sK}, s6, s{sTmp}")
        g(f"s_addc_u32 s{sK+1}, s7, 0")
        g(f"s_mov_b32 s{sK+2}, 131072")
        g(f"s_mov_b32 s{sK+3}, 0x00020000")
        g(f"buffer_load_dwordx4 {r(K[0][0],4)}, v{vQoff}, s[{sK}:{sK+3}], 0 offen")
        g(f"buffer_load_dwordx4 {r(K[0][1],4)}, v{vQoff}, s[{sK}:{sK+3}], 0 offen offset:32")
    qload((0, 1))
    if QD == 0:
        g(f"s_mov_b32 s{sP}, 4096")
        qload((2, 3))
    g("s_barrier")
    g("s_branch L_compute2")
    emit_helper()
    g.label("L_compute2")
    g(f"s_add_u32 s{sK}, s6, s{sTmp}")
    g(f"s_addc_u32 s{sK+1}, s7, 0")
    g(f"s_add_u32 s{sV}, s8, s{sTmp}")
    g(f"s_addc_u32 s{sV+1}, s9, 0")
    g(f"s_add_u32 s{sO}, s10, s{sTmp2}")
    g(f"s_addc_u32 s{sO+1}, s11, 0")
    for sr, n in ((sK, 131072), (sV, 131072), (sO, 8192)):
        g(f"s_mov_b32 s{sr+2}, {n}")
        g(f"s_mov_b32 s{sr+3}, 0x00020000")
    g(f"s_mov_b32 s{sSpin}, 0x40000")
    g(f"s_mov_b32 s{sP}, 4096")
    g(f"s_lshl_b32 s{sTmp}, s{sWave}, 8")
    g(f"s_add_u32 s{sTmp}, s{sTmp}, {PROG}")
    g(f"v_lshlrev_b32 v{vL16}, 4, v{T+1}")
    g(f"v_lshlrev_b32 v{vSy}, 2, v{T+1}")
    g(f"v_add_u32 v{vSy}, s{sTmp}, v{vSy}")
    g(f"v_mov_b32 v{vA}, v{vL16}")
    g(f"v_and_b32 v{T}, 15, v{T+1}")
    g(f"v_lshrrev_b32 v{T}, 2, v{T}")
    g(f"v_lshl_add_u32 v{T}, v{T+2}, 3, v{T}")
    g(f"v_lshlrev_b32 v{T}, 6, v{T}")
    g(f"v_lshrrev_b32 v{T+3}, 4, v{T+1}")
    g(f"v_and_b32 v{T+3}, 1, v{T+3}")
    g(f"v_lshl_add_u32 v{T}, v{T+3}, 5, v{T}")
    g(f"v_and_b32 v{T+3}, 3, v{T+1}")
    g(f"v_lshl_add_u32 v{T}, v{T+3}, 3, v{T}")
    g(f"v_add_u32 v{vT0}, {KB + FO}, v{T}")
    g(f"v_mov_b32 v{vT}, v{vT0}")
    g(f"v_mov_b32 v{T+3}, 0x3f803f80")
    g(f"v_mov_b32 v{IDX}, {U:#x}")
    if SPL:
        g(f"v_and_b32 v{T+2}, 15, v{T+1}")
        g(f"v_cmp_eq_u32 vcc, 0, v{T+2}")
        g(f"v_cmp_eq_u32 s[38:39], 4, v{T+2}")
        g("s_nop 0")
        g(f"v_cndmask_b32 v{ONES}, 0, v{T+3}, vcc")
        g(f"v_cndmask_b32 v{ONES+1}, 0, v{T+3}, vcc")
        g(f"v_cndmask_b32 v{ONES+2}, 0, v{T+3}, s[38:39]")
        g(f"v_cndmask_b32 v{ONES+3}, 0, v{T+3}, s[38:39]")
    else:
        g(f"v_lshrrev_b32 v{T+2}, 2, v{T+1}")
        g(f"v_and_b32 v{T+2}, 1, v{T+2}")
        g(f"v_cmp_eq_u32 vcc, 0, v{T+2}")
        g("s_nop 1")
        g(f"v_cndmask_b32 v{ONES}, 0, v{T+3}, vcc")
        g(f"v_cndmask_b32 v{ONES+1}, 0, v{T+3}, vcc")
        g(f"v_cndmask_b32 v{ONES+2}, v{T+3}, 0, vcc")
        g(f"v_cndmask_b32 v{ONES+3}, v{T+3}, 0, vcc")
    for j in range(4):
        for i in range(0, 16, 2): g(f"v_pk_mov_b32 {r(O[j]+i,2)}, 0, 0")
        for i in range(0, 4, 2): g(f"v_pk_mov_b32 {r(Lr[j]+i,2)}, 0, 0")
    cbits = f32bits(1.4426950408889634 * 32 ** -0.5)
    sCC = 72 if INSTR else 46
    g(f"s_mov_b32 s{sCC}, 0x{cbits:08x}")
    g(f"s_mov_b32 s{sCC+1}, 0x{cbits:08x}")
    g(f"s_mov_b32 s{sBase}, 0")
    g(f"s_mov_b32 s{sNeed}, 1")
    g(f"s_mov_b32 s{sBad}, 0")
    if INSTR == 1: g("s_memtime s[60:61]")
    g(f"s_waitcnt vmcnt({0 if QD else 4})")
    if INSTR == 1: g("s_memtime s[62:63]")
    def qscale(js):
        for j in js:
            for h in range(2):
                for i in range(4):
                    x = Q[j][h] + i
                    t = T + 2 * (i % 2)
                    g(f"v_lshlrev_b32 v{t}, 16, v{x}")
                    g(f"v_and_b32 v{t+1}, 0xffff0000, v{x}")
                    g(f"v_pk_mul_f32 {r(t,2)}, {r(t,2)}, s[{sCC}:{sCC+1}]")
                    g(f"v_cvt_pk_bf16_f32 v{x}, v{t}, v{t+1}")
    g(f"ds_read_b32 v{vFl}, v{vL16}")
    if QD: qload((2, 3))
    if OT == 1: g(f"buffer_load_dword v{CB[1]}, v{vQoff}, s[{sO}:{sO+3}], 0 offen")
    qscale((0, 1))
    slow = []
    def flagwait(name):
        g("s_waitcnt lgkmcnt(0)")
        g(f"v_readfirstlane_b32 s{sTmp}, v{vFl}")
        g("s_nop 0")
        g(f"s_cmp_ge_u32 s{sTmp}, s{sNeed}")
        g(f"s_cbranch_scc0 L_slow_{name}")
        g.label(f"L_ok_{name}")
        slow.append(name)
    if not DK: flagwait("k0")
    if INSTR == 1:
        g("s_memtime s[64:65]")
        g("s_waitcnt lgkmcnt(0)")
    inloop = [False]
    def kread1(kt, h):
        if (AB & 16) and inloop[0]: return
        g(f"ds_read_b128 {r(K[kt%2][h],4)}, v{vA} offset:{FO + (kt % CK) * 2048 + 1024*h}")
    def vread1(kt, i):
        if (AB & 16) and inloop[0]: return
        g(f"ds_read_b64_tr_b16 {r(V[kt%2][i//2] + 2*(i%2),2)}, v{vT} offset:{(kt % CK) * 2048 + (0, 256, 1024, 1280)[i]}")
    def qk(dst, kbuf, j, cin):
        g(f"v_mfma_f32_32x32x16_bf16 {r(dst,16)}, {r(K[kbuf][0],4)}, {r(Q[j][0],4)}, {cin}")
        g(f"v_mfma_f32_32x32x16_bf16 {r(dst,16)}, {r(K[kbuf][1],4)}, {r(Q[j][1],4)}, {r(dst,16)}")
    def pairmax(sa, sb_, cb):
        m = T
        g(f"v_max3_f32 v{m}, v{sa}, v{sa+1}, v{sa+2}")
        g(f"v_max3_f32 v{m+1}, v{sa+3}, v{sa+4}, v{sa+5}")
        g(f"v_max3_f32 v{m+2}, v{sa+6}, v{sa+7}, v{sa+8}")
        g(f"v_max3_f32 v{m+3}, v{sa+9}, v{sa+10}, v{sa+11}")
        g(f"v_max3_f32 v{m}, v{m}, v{sa+12}, v{sa+13}")
        g(f"v_max3_f32 v{m+1}, v{m+1}, v{sa+14}, v{sa+15}")
        for i in range(8):
            g(f"v_max3_f32 v{m+i%4}, v{m+i%4}, v{sb_+2*i}, v{sb_+2*i+1}")
        g(f"v_max3_f32 v{m}, v{m}, v{m+2}, v{m+3}")
        g(f"v_max_f32 v{m}, v{m}, v{m+1}")
        finish_max(m, cb)
    def finish_max(m, cb):
        g(f"v_mov_b32 v{m+1}, v{m}")
        g("s_nop 1")
        g(f"v_permlane32_swap_b32 v{m}, v{m+1}")
        g("s_nop 1")
        g(f"v_max_f32 v{m}, v{m}, v{m+1}")
        g(f"v_sub_f32 v{CB[cb]}, 0, v{m}")
        g(f"v_sub_f32 v{CB[cb]+1}, 0, v{m}")
        for i in range(2, 16, 2): g(f"v_pk_mov_b32 {r(CB[cb]+i,2)}, {r(CB[cb],2)}, {r(CB[cb],2)}")
    if DK:
        g("s_nop 0")
    else:
        kread1(0, 0); kread1(0, 1)
        for i in range(4): vread1(0, i)
        g("s_waitcnt lgkmcnt(4)")
    qk(S[0], 0, 0, "0"); qk(S[1], 0, 1, "0")
    g(f"ds_read_b32 v{vFl}, v{vL16}")
    g(f"s_mov_b32 s{sNeed}, 2")
    g("s_nop 7")
    pairmax(S[0], S[1], 0)
    g("s_nop 1")
    qk(S[0], 0, 0, r(CB[0], 16))
    flagwait("k1")
    if DK:
        for i in range(4): vread1(0, i)
    kread1(1, 0); kread1(1, 1)
    g(f"ds_read_b32 v{vFl}, v{vL16}")
    if INSTR:
        g("s_memtime s[46:47]")
        g("s_waitcnt lgkmcnt(0)")
    g("s_nop 7")
    g("s_nop 1")
    def pv(j, vb, half, sbuf):
        if ABL == 3:
            g(f"v_mfma_f32_32x32x16_bf16 {r(O[j],16)}, {r(V[vb][half],4)}, {r(Q[j][half], 4)}, {r(O[j],16)}"); g("s_nop 0"); g("s_nop 0"); return
        if ABL == 4 or (AB & 2):
            g("s_nop 2"); return
        g(f"v_smfmac_f32_32x32x32_bf16 {r(O[j],16)}, {r(V[vb][half],4)}, {r(sbuf + 8*half, 8)}, v{IDX}")
    def ls(j, half, sbuf):
        if ABL == 1 or (AB & 1):
            g("s_nop 2"); return
        g(f"v_smfmac_f32_16x16x64_bf16 {r(Lr[j],4)}, {r(ONES,4)}, {r(sbuf + 8*half, 8)}, v{IDX}")
    def region(name, order, prev_j, next_j, has_next, hooks=None, extra=None, skip_last2=False, lead2=False):
        NQ = len(order)
        NST = NQ * CK
        sched = {}
        def at(kt, jj, slot, fn): sched.setdefault((kt * NQ + jj, slot), []).append(fn)
        kj = 2 if NQ == 4 else 1
        for kt in range(CK):
            at(kt, 0, "pv2", lambda: g("s_waitcnt lgkmcnt(0)"))
            if kt + 1 < CK or has_next:
                if kt + 1 == CK: at(kt, 0, "qkb", lambda: g(f"v_add_u32 v{vT}, s{sBase}, v{vT0}"))
                if NQ == 4:
                    for i, (jj, sl) in enumerate(((0, "l2"), (0, "l1"), (1, "l2"), (1, "l1"))):
                        at(kt, jj, sl, lambda kt=kt, i=i: vread1(kt + 1, i))
                else:
                    for i, sl in enumerate(("l2", "l2", "l1", "l1")):
                        at(kt, 0, sl, lambda kt=kt, i=i: vread1(kt + 1, i))
            if kt + 2 < CK or has_next:
                if kt + 2 == CK: at(kt, kj, "qkb", lambda: g(f"v_add_u32 v{vA}, s{sBase}, v{vL16}"))
                at(kt, kj, "l2", lambda kt=kt: kread1(kt + 2, 0))
                at(kt, kj, "l1", lambda kt=kt: kread1(kt + 2, 1))
        if has_next and NQ == 4:
            at(CK - 3, 3, "l2", lambda: g(f"ds_read_b32 v{vFl}, v{vL16}"))
            at(CK - 2, 1, "qka", lambda: g(f"s_add_u32 s{sNeed}, s{sNeed}, 4"))
            at(CK - 2, 1, "qkb", lambda: g(f"s_add_u32 s{sBase}, s{sBase}, {CH}"))
            at(CK - 2, 1, "qkb", lambda: g(f"v_readfirstlane_b32 s{sTmp}, v{vFl}"))
            at(CK - 2, 1, "pv2", lambda: g(f"s_and_b32 s{sBase}, s{sBase}, {RING-1}"))
            def chk():
                g(f"s_cmp_ge_u32 s{sTmp}, s{sNeed}")
                g(f"s_cbranch_scc0 L_slow_{name}")
                g.label(f"L_ok_{name}")
                slow.append(name)
            at(CK - 2, 1, "pv1", chk)
            at(CK - 1, 3, "l2", lambda: g(f"ds_add_u32 v{vSy}, v{IDX}"))
        if has_next and NQ == 2:
            for kt in range(CK):
                need = kt + 3 if kt < CK - 1 else 2 * CK
                if kt > 0: at(kt - 1, 1, "pv1", lambda: g(f"ds_read_b32 v{vFl}, v{vL16}"))
                def chk(kt=kt, need=need):
                    if INSTR == 3 and kt == CK - 1: g("s_memtime s[60:61]")
                    g(f"s_mov_b32 s{sNeed}, {need}")
                    g(f"v_readfirstlane_b32 s{sTmp}, v{vFl}")
                    if kt == CK - 2: g(f"s_mov_b32 s{sBase}, {CH}")
                    else: g("s_nop 0")
                    g(f"s_cmp_ge_u32 s{sTmp}, s{sNeed}")
                    g(f"s_cbranch_scc0 L_slow_{name}{kt}")
                    g.label(f"L_ok_{name}{kt}")
                    slow.append(f"{name}{kt}")
                at(kt, 0, "pv1", chk)
            at(CK - 1, 1, "pv1", lambda: g(f"ds_add_u32 v{vSy}, v{IDX}"))
        if extra:
            for k, fns in extra.items(): sched.setdefault(k, []).extend(fns)
        for n in range(NST):
            kt, jj = n // NQ, n % NQ
            j = order[jj]
            sb = S[n % 4]; sprev = S[(n - 1) % 4]; snext = S[(n + 1) % 4]
            if n == 0: prev = None if prev_j is None else (CK - 1, prev_j)
            else: prev = ((n - 1) // NQ, order[(n - 1) % NQ])
            if n == NST - 1: nxt = None if next_j is None else (CK, next_j)
            else: nxt = ((n + 1) // NQ, order[(n + 1) % NQ])
            e = iter(range(16))
            def ex(k):
                for _ in range(k):
                    i = next(e); g(f"v_exp_f32 v{sb+i}, v{sb+i}" if (ABL != 5 and not (AB & 4)) else "v_nop\n    v_nop")
            def slot(nm):
                for fn in sched.get((n, nm), []): fn()
            g.c(f"---- {name} step {n}: kt={kt} j={j}")
            if n == 0 and lead2:
                g(f"v_exp_f32 v{sprev+14}, v{sprev+14}")
                g(f"v_exp_f32 v{sprev+15}, v{sprev+15}")
            if hooks and (n, "top") in hooks: hooks[(n, "top")]()
            if nxt and (AB & 8): g("s_nop 1")
            elif nxt and ABL == 2: g(f"v_mfma_f32_32x32x16_bf16 {r(snext,16)}, {r(K[nxt[0]%2][0],4)}, {r(Q[nxt[1]][0],4)}, 0")
            elif nxt: g(f"v_mfma_f32_32x32x16_bf16 {r(snext,16)}, {r(K[nxt[0]%2][0],4)}, {r(Q[nxt[1]][0],4)}, {r(CB[nxt[1]//2],16)}")
            slot("qka")
            ex(3)
            if nxt and (AB & 8): g("s_nop 1")
            elif nxt: g(f"v_mfma_f32_32x32x16_bf16 {r(snext,16)}, {r(K[nxt[0]%2][1],4)}, {r(Q[nxt[1]][1],4)}, {r(snext,16)}")
            slot("qkb")
            ex(3)
            if prev: pv(prev[1], prev[0] % 2, 1, sprev)
            slot("pv2")
            ex(3)
            if prev: ls(prev[1], 1, sprev)
            slot("l2")
            ex(2)
            pv(j, kt % 2, 0, sb)
            slot("pv1")
            ex(3)
            ls(j, 0, sb)
            slot("l1")
            if not (skip_last2 and n == NST - 1): ex(2)
            if hooks and (n, "end") in hooks: hooks[(n, "end")]()
    def q23():
        g.c("Q tiles 2,3: scale, stand-in max from chunk 1 tile 0")
        if INSTR == 3: g("s_memtime s[62:63]")
        g("s_waitcnt vmcnt(0)")
        if INSTR == 3: g("s_memtime s[64:65]")
        qscale((2, 3))
        g("s_nop 1")
        sa, sb_ = S[(QP + 1) % 4], S[(QP + 2) % 4]
        kb = ((QP + 1) // 2) % 2
        qk(sa, kb, 2, "0"); qk(sb_, kb, 3, "0")
        g("s_nop 7")
        g("s_nop 1")
        pairmax(sa, sb_, 1)
        g("s_nop 1")
    region("head", (0, 1), None, 2, True, hooks={(QP, "top"): q23},
           extra={(2 * CK - 1, "pv1"): [lambda: g(f"s_mov_b32 s{sIt}, 1")]}, skip_last2=True)
    if INSTR == 2: g("s_memtime s[60:61]")
    g.L.append(".p2align 6")
    g.label("L_loop")
    inloop[0] = True
    for u in range(UNR):
        ex_ = None
        if u == UNR - 1:
            ex_ = {(4 * CK - 1, "pv1"): [lambda: g(f"s_add_u32 s{sIt}, s{sIt}, {UNR}"), lambda: g(f"s_cmp_lt_u32 s{sIt}, {NCH}")]}
        region(f"body{u}", (2, 3, 0, 1), 1, 2, True, extra=ex_, skip_last2=True, lead2=True)
    if INSTR == 2:
        g("s_cbranch_scc0 L_exit")
        g(f"s_cmp_eq_u32 s{sIt}, {1 + UNR}")
        g("s_cbranch_scc0 L_loop")
        g("s_memtime s[62:63]")
        g("s_branch L_loop")
        g.label("L_exit")
        g("s_memtime s[64:65]")
    else:
        g("s_cbranch_scc1 L_loop")
    def check_store(js, bit, P, X):
        final_store(js, P, None)
        a, b = js
        for x, j in enumerate(js):
            for i in range(0, 16, 2):
                t = X + (i // 2) % 4
                if x == 0 and i < 8: g(f"v_maximum3_f32 v{t}, abs(v{O[j]+i}), abs(v{O[j]+i+1}), abs(v{O[j]+i+1})")
                else: g(f"v_maximum3_f32 v{t}, abs(v{O[j]+i}), abs(v{O[j]+i+1}), v{t}")
        g(f"v_maximum3_f32 v{X}, v{X}, v{X+1}, v{X+2}")
        g(f"v_maximum3_f32 v{X+4}, v{Lr[a]}, v{Lr[b]}, v{Lr[b]}")
        g(f"v_minimum3_f32 v{X+5}, v{Lr[a]}, v{Lr[b]}, v{Lr[b]}")
        g(f"v_maximum3_f32 v{X}, v{X}, v{X+3}, v{X+3}")
        g(f"v_mov_b32 v{X+1}, 0x5f800000")
        g(f"v_mov_b32 v{X+2}, 0x{(127 - LO) << 23:08x}")
        g(f"v_mov_b32 v{X+3}, 0x7f800000")
        g(f"v_cmp_nlt_f32 s[38:39], v{X+4}, v{X+1}")
        g(f"v_cmp_nlt_f32 vcc, v{X}, v{X+3}")
        g(f"v_cmp_nge_f32 s[42:43], v{X+5}, v{X+2}")
        g("s_nop 1")
        g("s_or_b64 vcc, vcc, s[38:39]")
        g("s_or_b64 vcc, vcc, s[42:43]")
        g("s_cmp_lg_u64 vcc, 0")
        g(f"s_cselect_b32 s{sTmp}, {bit}, 0")
        g(f"s_or_b32 s{sBad}, s{sBad}, s{sTmp}")
    def final_store(js, P, soff):
        a, b = js
        for x, j in enumerate(js):
            if SPL:
                g(f"v_mov_b32 v{Lr[j]+1}, v{Lr[j]}")
                g("s_nop 1")
                g(f"v_permlane32_swap_b32 v{Lr[j]}, v{Lr[j]+1}")
                g("s_nop 0")
                g(f"v_rcp_f32 v{T+2*x}, v{Lr[j]}")
                g(f"v_rcp_f32 v{T+2*x+1}, v{Lr[j]}")
            else:
                g(f"v_rcp_f32 v{T+2*x}, v{Lr[j]}")
                g(f"v_rcp_f32 v{T+2*x+1}, v{Lr[j]+1}")
            g("s_nop 0")
            for i in range(0, 16, 2): g(f"v_pk_mul_f32 {r(O[j]+i,2)}, {r(O[j]+i,2)}, {r(T+2*x,2)}")
            PP = P + 8 * x
            for gq in range(4):
                g(f"v_cvt_pk_bf16_f32 v{PP+2*gq}, v{O[j]+4*gq}, v{O[j]+4*gq+1}")
                g(f"v_cvt_pk_bf16_f32 v{PP+2*gq+1}, v{O[j]+4*gq+2}, v{O[j]+4*gq+3}")
            g("s_nop 1")
            for pr in range(2):
                bb = PP + 4 * pr
                g(f"v_permlane32_swap_b32 v{bb}, v{bb+2}")
                g(f"v_permlane32_swap_b32 v{bb+1}, v{bb+3}")
            g("s_nop 1")
            if FL:
                for i in range(4): g(f"v_permlane16_swap_b32 v{PP+i}, v{PP+4+i}")
                g("s_nop 0")
            for pr in range(2):
                va = vFl if FL else vQoff
                po = pr * 1024 if FL else pr * 32
                if soff is None:
                    off = j * 2048 + po
                    so = "0" if off < 4096 else f"s{sP}"
                    g(f"buffer_store_dwordx4 {r(PP+4*pr,4)}, v{va}, s[{sO}:{sO+3}], {so} offen offset:{off % 4096}{STF}")
                else:
                    g(f"buffer_store_dwordx4 {r(PP+4*pr,4)}, v{va}, s[{sO}:{sO+3}], s{soff} offen offset:{x*2048 + po}")
    def store_addr():
        g(f"v_and_b32 v{vFl}, 0xf0, v{vL16}")
        g(f"v_lshlrev_b32 v{vFl}, 2, v{vFl}")
        g(f"v_and_b32 v{T}, 0x100, v{vL16}")
        g(f"v_lshrrev_b32 v{T}, 3, v{T}")
        g(f"v_or_b32 v{vFl}, v{vFl}, v{T}")
        g(f"v_and_b32 v{T}, 0x200, v{vL16}")
        g(f"v_lshrrev_b32 v{T}, 5, v{T}")
        g(f"v_or_b32 v{vFl}, v{vFl}, v{T}")
    def first_pair():
        if FL: store_addr()
        check_store((0, 1), 1, Q[0][0], CB[0])
    region("tail", (2, 3), 1, None, False, hooks={(1, "end"): first_pair}, lead2=True)
    g("s_nop 1")
    pv(3, (CK - 1) % 2, 1, S[3]); ls(3, 1, S[3])
    if INSTR: g("s_memtime s[48:49]")
    check_store((2, 3), 2, Q[2][0], CB[0])
    g(f"s_cmp_lg_u32 s{sBad}, 0")
    if not ABL: g("s_cbranch_scc1 L_fallback")
    g.label("L_done")
    if INSTR:
        g("s_waitcnt vmcnt(0)")
        g("s_memtime s[50:51]")
        g("s_memrealtime s[54:55]")
        g("s_waitcnt lgkmcnt(0)")
        g("s_mov_b32 s68, s56")
        g("s_mov_b32 s69, s57")
        g("s_mov_b32 s70, 0x100000")
        g("s_mov_b32 s71, 0x00020000")
        g(f"s_lshl_b32 s{sTmp}, s2, 2")
        g(f"s_add_u32 s{sTmp}, s{sTmp}, s{sWave}")
        g(f"s_lshl_b32 s{sTmp}, s{sTmp}, 6")
        g("s_getreg_b32 s58, hwreg(HW_REG_XCC_ID)")
        g("s_getreg_b32 s59, hwreg(HW_REG_HW_ID)")
        for i, sr in enumerate((44, 46, 48, 50, 52, 54, 58, 59, 60, 60, 62, 64)):
            g(f"v_mov_b32 v{40+i}, s{sr}")
        g(f"v_mov_b32 v39, s{sTmp}")
        g("s_mov_b64 exec, 1")
        g("buffer_store_dwordx4 v[40:43], v39, s[68:71], 0 offen")
        g("buffer_store_dwordx4 v[44:47], v39, s[68:71], 0 offen offset:16")
        g("buffer_store_dwordx4 v[48:51], v39, s[68:71], 0 offen offset:32")
        g("s_waitcnt vmcnt(0)")
    g("s_endpgm")
    for name in slow:
        g.label(f"L_slow_{name}")
        g(f"s_sub_u32 s{sSpin}, s{sSpin}, 1")
        g("s_cbranch_scc1 L_end")
        g("s_sleep 1")
        g(f"ds_read_b32 v{vFl}, v{vL16}")
        g("s_waitcnt lgkmcnt(0)")
        g(f"v_readfirstlane_b32 s{sTmp}, v{vFl}")
        g("s_nop 0")
        g(f"s_cmp_ge_u32 s{sTmp}, s{sNeed}")
        g(f"s_cbranch_scc0 L_slow_{name}")
        g(f"s_branch L_ok_{name}")
    g.label("L_fallback")
    g("s_waitcnt vmcnt(0) lgkmcnt(0)")
    g(f"s_lshl_b32 s{sBase}, s{sWave}, 11")
    g(f"s_add_u32 s{sBase}, s{sBase}, {FBL}")
    g(f"s_sub_u32 s{sTmp}, s{sBase}, {KB + FO}")
    g(f"v_add_u32 v{vT}, s{sTmp}, v{vT0}")
    g(f"s_mov_b32 s{sP}, 0")
    g.label("L_fb_pair")
    g(f"s_and_b32 s{sTmp}, s{sBad}, 1")
    g("s_cbranch_scc0 L_fb_next")
    for j in range(2):
        for h in range(2):
            g(f"buffer_load_dwordx4 {r(Q[j][h], 4)}, v{vQoff}, s[{sQ}:{sQ+3}], s{sP} offen offset:{j*2048 + h*32}")
    g("s_waitcnt vmcnt(0)")
    qscale((0, 1))
    M0r, M1r = S[2], S[2] + 4
    g(f"v_mov_b32 v{M0r}, 0xff800000")
    g(f"v_mov_b32 v{M1r}, 0xff800000")
    g(f"s_mov_b32 s{sGoff}, 0")
    g.label("L_fb_max")
    g(f"buffer_load_dwordx4 {r(K[0][0],4)}, v{vQoff}, s[{sK}:{sK+3}], s{sGoff} offen")
    g(f"buffer_load_dwordx4 {r(K[0][1],4)}, v{vQoff}, s[{sK}:{sK+3}], s{sGoff} offen offset:32")
    g("s_waitcnt vmcnt(0)")
    qk(S[0], 0, 0, "0"); qk(S[1], 0, 1, "0")
    g("s_nop 15")
    for j, m in ((0, M0r), (1, M1r)):
        for i in range(0, 16, 2):
            g(f"v_max3_f32 v{m}, v{m}, v{S[j]+i}, v{S[j]+i+1}")
    g(f"s_add_u32 s{sGoff}, s{sGoff}, 2048")
    g(f"s_cmp_lt_u32 s{sGoff}, 131072")
    g("s_cbranch_scc1 L_fb_max")
    for j, m in ((0, M0r), (1, M1r)):
        finish_max(m, j)
        for i in range(16): g(f"v_mov_b32 v{O[j]+i}, 0")
        for i in range(4): g(f"v_mov_b32 v{Lr[j]+i}, 0")
    g(f"s_mov_b32 s{sGoff}, 0")
    g.label("L_fb_loop")
    g(f"buffer_load_dwordx4 {r(K[0][0],4)}, v{vQoff}, s[{sK}:{sK+3}], s{sGoff} offen")
    g(f"buffer_load_dwordx4 {r(K[0][1],4)}, v{vQoff}, s[{sK}:{sK+3}], s{sGoff} offen offset:32")
    g(f"s_mov_b32 m0, s{sBase}")
    g("s_nop 0")
    g(f"buffer_load_dwordx4 v{vL16}, s[{sV}:{sV+3}], s{sGoff} offen lds")
    g(f"buffer_load_dwordx4 v{vL16}, s[{sV}:{sV+3}], s{sGoff} offen offset:1024 lds")
    g("s_waitcnt vmcnt(0)")
    for i in range(4): vread1(0, i)
    qk(S[0], 0, 0, r(CB[0], 16)); qk(S[1], 0, 1, r(CB[1], 16))
    g("s_nop 15")
    for j in range(2):
        for i in range(16): g(f"v_exp_f32 v{S[j]+i}, v{S[j]+i}")
    g("s_waitcnt lgkmcnt(0)")
    g("s_nop 1")
    for j in range(2):
        pv(j, 0, 0, S[j]); pv(j, 0, 1, S[j]); ls(j, 0, S[j]); ls(j, 1, S[j])
    g(f"s_add_u32 s{sGoff}, s{sGoff}, 2048")
    g(f"s_cmp_lt_u32 s{sGoff}, 131072")
    g("s_cbranch_scc1 L_fb_loop")
    g("s_nop 15")
    g("s_nop 3")
    final_store((0, 1), S[2], sP)
    g("s_waitcnt vmcnt(0)")
    g.label("L_fb_next")
    g(f"s_lshr_b32 s{sBad}, s{sBad}, 1")
    g(f"s_add_u32 s{sP}, s{sP}, 4096")
    g(f"s_cmp_lt_u32 s{sP}, 8192")
    g("s_cbranch_scc1 L_fb_pair")
    g("s_branch L_done")
    g.label("L_end")
    g("s_endpgm")
    hdr = open("cdna_kernels/" + NAME + ".s.ref").read().split("; Override launch")[0]
    out = hdr + f"""; Override launch geometry by editing the next line (default: block=256,
; grid=ceil(out_elems/256), lds=0). Harness parses it; keep it on one line.
; @launch grid=(256,1,1) block=(320,1,1) lds={LDS}
; -----------------------------------------------------------------------------------------------
; Fused attention forward, B*H=64 heads, S=2048, Dh=32, bf16.  One workgroup = 512 queries of one head.
;   waves 0-3 : compute, one per SIMD, four 32-query tiles each
;   wave  4   : loader, streams K/V key tiles into an 8-slot LDS ring with LDS-DMA
;   sync      : two LDS counters (READY = key tiles landed, PROG = chunks consumed); one s_barrier after their init
; Per 32x32 score tile:  S^T = K*Q^T - m  (2 MFMA, Q pre-scaled by log2(e)/sqrt(Dh), -m enters through the C operand),
;   P = exp2(S^T) in place (16 v_exp_f32),  O^T += V^T*P^T and l += sum(P) by sparse MFMAs whose index selects the
;   high (bf16) half of every fp32 P register, so numerator and denominator use the same bf16 P.
; Softmax guard: m is the true max of one early key tile for each query pair.  After the pass every row is checked
;   (2^-64 <= l < 2^64 and finite outputs); a pair that fails is recomputed at L_fallback with the true row max over
;   all keys (two passes), so the result never depends on that stand-in being good.
; q-tiles 2,3 start one chunk later than tiles 0,1 and wrap around, which overlaps Q loads / O stores with compute.
; Generated by my own script (gen/gen10.py).
; -----------------------------------------------------------------------------------------------
.amdgcn_target "amdgcn-amd-amdhsa--gfx950"
.text
.globl {NAME}_kernel
.p2align 8
.type {NAME}_kernel,@function
{NAME}_kernel:
{g.text()}
.section .rodata,"a"
.p2align 6
.amdhsa_kernel {NAME}_kernel
  .amdhsa_next_free_vgpr 256
  .amdhsa_next_free_sgpr {80 if INSTR else 48}
  .amdhsa_accum_offset 256
  .amdhsa_group_segment_fixed_size 0
  .amdhsa_kernarg_size 48
  .amdhsa_user_sgpr_count 2
  .amdhsa_user_sgpr_kernarg_segment_ptr 1
  .amdhsa_system_sgpr_workgroup_id_x 1
.end_amdhsa_kernel
"""
    return out

if __name__ == "__main__":
    out = sys.argv[1] if len(sys.argv) > 1 else f"cdna_kernels/{NAME}.s"
    kw = dict(a.split("=") for a in sys.argv[2:])
    kw = {k: int(v) for k, v in kw.items()}
    open(out, "w").write(gen(**kw))
```

```python
import sys, struct

NAME = "standalone__fused_io_aware_attn__prompt"
def f32bits(x): return struct.unpack("<I", struct.pack("<f", x))[0]

class Gen:
    def __init__(s): s.L = []
    def __call__(s, txt): s.L.append("    " + txt)
    def label(s, l): s.L.append(l + ":")
    def c(s, t): s.L.append("    ; " + t)
    def text(s): return "\n".join(s.L)

def gen(NS=8, R=4, INSTR=0, SLP=12, UNR=1, LO=40, ABL=0, PF=2, W=8, B0=2, ST=1, OT=0, FL=1, PFW=256, QNT=1, KNT=0, AB=0, QD=1, GROW=1, PFE=0, SPL=1, QP=4, DK=0, NP=1, XC=0, PM=1):
    if AB: ABL = 99
    STF = ['', ' sc1', ' sc0 sc1', ' nt', ' sc1 nt', ' sc0 sc1 nt'][ST]
    g = Gen()
    CK = 4
    D = 2
    KB = CK * 2048
    CH = 2 * KB
    NCH = 64 // CK
    NCHT = NCH + 1
    RING = NS * CH
    FO = 2048
    READY = 0
    PROG = 1024
    FBL = RING + 2048
    LDS = RING + 2048 + 8192
    U = 0xdddd
    assert R >= D + 1 and R <= NS - 1 and (NCH - 1) % UNR == 0
    S = [0, 16, 32, 48]
    CB = [64, 80]
    O = [96, 112, 128, 144]
    Q = [[160 + 8 * j + 4 * h for h in range(2)] for j in range(4)]
    K = [[192 + 8 * b + 4 * h for h in range(2)] for b in range(2)]
    V = [[208 + 8 * b + 4 * h for h in range(2)] for b in range(2)]
    Lr = [224 + 4 * j for j in range(4)]
    ONES, IDX = 240, 244
    vA, vL16, vSy, vFl, vQoff, vT, vT0 = 245, 246, 247, 248, 249, 250, 251
    T = 252
    def r(b, n): return f"v[{b}:{b+n-1}]"
    sK, sV, sQ, sO = 12, 16, 20, 24
    sWave, sHead, sQB = 28, 29, 30
    sGoff, sBase, sIt, sTmp, sC = 31, 32, 33, 34, 35
    sTmp2, sNeed, sBad, sP, sSpin = 36, 37, 40, 41, 3
    def emit_helper():
        NT = NCHT * CK
        P1 = 4 * (R + 1)
        hZ, hPa, hP, hOne, hOne2, hOne3 = 8, 12, 13, 14, 5, 6
        sX, sM, sG = 32, 33, 35
        knt = ' nt' if KNT else ''
        def call(): g("s_call_b64 s[38:39], L_issue")
        def pub(reg): g(f"ds_add_u32 v{vL16}, v{reg}")
        g.label("L_helper")
        g(f"v_and_b32 v{T+1}, 63, v0")
        g(f"s_and_b32 s{sTmp}, s{sTmp2}, 0xfffe0000")
        g(f"v_lshlrev_b32 v{vL16}, 4, v{T+1}")
        g(f"v_add_u32 v{vFl}, 32, v{vQoff}")
        if XC & 2:
            g(f"v_mov_b32 v{vQoff}, v{vL16}")
            g(f"v_add_u32 v{vFl}, 1024, v{vL16}")
        for sr, n in ((sK, 131072), (sV, 131072)):
            g(f"s_mov_b32 s{sr+2}, {n}")
            g(f"s_mov_b32 s{sr+3}, 0x00020000")
        g(f"s_mov_b32 s{sX}, 0")
        g("s_waitcnt lgkmcnt(0)")
        g(f"s_add_u32 s{sK}, s6, s{sTmp}")
        g(f"s_addc_u32 s{sK+1}, s7, 0")
        g(f"s_add_u32 s{sV}, s8, s{sTmp}")
        g(f"s_addc_u32 s{sV+1}, s9, 0")
        call()
        g("s_branch L_h2")
        g.label("L_issue")
        g(f"s_and_b32 s{sM}, s{sX}, {4*(NS-1)}")
        g(f"s_lshl_b32 s{sM}, s{sM}, {CH.bit_length()-1-2}")
        g(f"s_and_b32 s{sTmp}, s{sX}, 3")
        g(f"s_lshl_b32 s{sTmp}, s{sTmp}, 11")
        g(f"s_add_u32 s{sM}, s{sM}, s{sTmp}")
        g(f"s_add_u32 s{sM}, s{sM}, {FO}")
        g(f"s_mov_b32 m0, s{sM}")
        g(f"s_and_b32 s{sG}, s{sX}, 63")
        g(f"s_lshl_b32 s{sG}, s{sG}, 11")
        g(f"buffer_load_dwordx4 v{vQoff}, s[{sK}:{sK+3}], s{sG} offen{knt} lds")
        g(f"s_add_u32 s{sTmp}, s{sM}, 1024")
        g(f"s_mov_b32 m0, s{sTmp}")
        g(f"s_add_u32 s{sTmp}, s{sM}, {KB}")
        g(f"buffer_load_dwordx4 v{vFl}, s[{sK}:{sK+3}], s{sG} offen{knt} lds")
        g(f"s_mov_b32 m0, s{sTmp}")
        g(f"s_add_u32 s{sX}, s{sX}, 1")
        g(f"buffer_load_dwordx4 v{vL16}, s[{sV}:{sV+3}], s{sG} offen{knt} lds")
        g(f"buffer_load_dwordx4 v{vL16}, s[{sV}:{sV+3}], s{sG} offen offset:1024{knt} lds")
        g("s_setpc_b64 s[38:39]")
        g.label("L_h2")
        for i in range(4): g(f"v_mov_b32 v{hZ+i}, 0")
        g(f"ds_write_b128 v{vL16}, {r(hZ,4)}")
        g(f"ds_write_b128 v{vL16}, {r(hZ,4)} offset:1024")
        call()
        g("s_waitcnt lgkmcnt(0)")
        g("s_barrier")
        W0 = 4 if GROW else W
        for _ in range(W0 - 2): call()
        g(f"v_and_b32 v{hP}, 3, v{T+1}")
        g(f"v_lshlrev_b32 v{hPa}, 8, v{hP}")
        g(f"v_mov_b32 v{hOne}, 1")
        g(f"v_mov_b32 v{hOne2}, {W-1}")
        g(f"v_mov_b32 v{hOne3}, 4")
        g(f"s_mov_b32 s{sSpin}, 0x40000")
        for w in range(W0, W):
            g(f"s_waitcnt vmcnt({4*(w-1)})")
            pub(hOne)
            call(); call()
        g.label("L_hph1")
        g(f"s_waitcnt vmcnt({4*(W-1)})")
        pub(hOne)
        g(f"s_cmp_lt_u32 s{sX}, {P1}")
        g("s_cbranch_scc0 L_hdrain")
        call()
        g("s_branch L_hph1")
        g.label("L_hdrain")
        g("s_waitcnt vmcnt(0)")
        pub(hOne2)
        if OT == 2:
            g(f"s_and_b32 s{sTmp}, s2, 7")
            g(f"s_lshr_b32 s{sTmp2}, s2, 5")
            g(f"s_lshl_b32 s{sTmp}, s{sTmp}, 3")
            g(f"s_add_u32 s{sTmp}, s{sTmp}, s{sTmp2}")
            g(f"s_lshl_b32 s{sTmp}, s{sTmp}, 17")
            g(f"s_add_u32 s{sO}, s10, s{sTmp}")
            g(f"s_addc_u32 s{sO+1}, s11, 0")
            g(f"s_mov_b32 s{sO+2}, 131072")
            g(f"s_mov_b32 s{sO+3}, 0x00020000")
            g(f"buffer_load_dword v30, v{vL16}, s[{sO}:{sO+3}], 0 offen")
        g.label("L_hchunk")
        g(f"s_lshr_b32 s{sTmp2}, s{sX}, 2")
        g(f"s_sub_u32 s{sTmp2}, s{sTmp2}, {R}")
        g(f"s_mul_i32 s{sTmp2}, s{sTmp2}, {U}")
        g.label("L_hpoll")
        g(f"ds_read_b32 v{hP}, v{hPa} offset:{PROG}")
        g("s_waitcnt lgkmcnt(0)")
        g("s_setprio 3")
        g(f"v_cmp_gt_u32 vcc, s{sTmp2}, v{hP}")
        g("s_setprio 0")
        g("s_nop 0")
        g("s_cmp_eq_u64 vcc, 0")
        g("s_cbranch_scc1 L_hgo")
        g(f"s_sleep {SLP}")
        g(f"s_sub_u32 s{sSpin}, s{sSpin}, 1")
        g("s_cbranch_scc0 L_hpoll")
        g("s_endpgm")
        g.label("L_hgo")
        for _ in range(4): call()
        g("s_waitcnt vmcnt(0)")
        pub(hOne3)
        g(f"s_cmp_lt_u32 s{sX}, {NT}")
        g("s_cbranch_scc1 L_hchunk")
        g("s_waitcnt lgkmcnt(0)")
        g("s_endpgm")
    g("s_lshr_b32 s3, s2, 8")
    g("s_cbranch_scc1 L_end")
    g("s_load_dwordx4 s[4:7], s[0:1], 0")
    g("s_load_dwordx4 s[8:11], s[0:1], 16")
    if INSTR:
        g("s_memtime s[44:45]")
        g("s_memrealtime s[52:53]")
        g("s_load_dwordx2 s[56:57], s[0:1], 40")
    if PM == 3:
        g(f"v_lshrrev_b32 v{T}, 6, v0")
        g("s_getpc_b64 s[42:43]")
        g(f"v_readfirstlane_b32 s{sWave}, v{T}")
        g(f"v_and_b32 v{T+1}, 63, v0")
        g(f"s_cmp_eq_u32 s{sWave}, 5")
        g("s_cbranch_scc0 L_nopf")
        g(f"v_mul_u32_u24 v{T+1}, 64, v{T+1}")
        g(f"global_load_dword v16, v{T+1}, s[42:43]")
        g(f"v_add_u32 v{T+2}, 4096, v{T+1}")
        g(f"global_load_dword v17, v{T+2}, s[42:43]")
        g(f"global_load_dword v18, v{T+2}, s[42:43] offset:2048")
        g("s_endpgm")
        g.label("L_nopf")
    if PM == 1:
        g("s_getpc_b64 s[42:43]")
        g(f"v_lshlrev_b32 v{T}, 5, v0")
        g(f"global_load_dword v16, v{T}, s[42:43]")
    if PM == 2:
        g("s_getpc_b64 s[42:43]")
        g(f"v_lshlrev_b32 v{T}, 4, v0")
        g(f"global_load_dwordx4 v[16:19], v{T}, s[42:43]")
        g(f"v_add_u32 v{T+1}, 5120, v{T}")
        g(f"global_load_dwordx4 v[20:23], v{T+1}, s[42:43]")
    g(f"s_and_b32 s{sTmp}, s2, 7")
    g(f"s_lshl_b32 s{sTmp}, s{sTmp}, 20")
    g(f"s_lshr_b32 s{sTmp2}, s2, 3")
    g(f"s_lshl_b32 s{sTmp2}, s{sTmp2}, 15")
    g(f"s_or_b32 s{sTmp2}, s{sTmp2}, s{sTmp}")
    g(f"v_and_b32 v{T}, 31, v0")
    g(f"v_lshlrev_b32 v{vQoff}, 6, v{T}")
    g(f"v_bfe_u32 v{T+2}, v0, 5, 1")
    g(f"v_lshl_or_b32 v{vQoff}, v{T+2}, 4, v{vQoff}")
    g(f"v_lshrrev_b32 v{T}, 6, v0")
    g(f"v_lshl_add_u32 v{T+3}, v{T}, 13, v{vQoff}")
    g(f"v_readfirstlane_b32 s{sWave}, v{T}")
    g(f"v_add_u32 v{T+3}, s{sTmp2}, v{T+3}")
    g(f"s_cmp_eq_u32 s{sWave}, 4")
    g("s_cbranch_scc1 L_helper")
    g("s_waitcnt lgkmcnt(0)")
    qnt = ' nt' if QNT else ''
    for j in range(2):
        for h in range(2):
            g(f"global_load_dwordx4 {r(Q[j][h], 4)}, v{T+3}, s[4:5] offset:{j*2048 + h*32}{qnt}")
    def prefetch_code():
        g("s_getpc_b64 s[42:43]")
        g(f"v_mul_u32_u24 v{T}, 40, v0")
        g(f"global_load_dword v{CB[1]}, v{T}, s[42:43]")
    if PM == 0: prefetch_code()
    def qload(js):
        for j in js:
            for h in range(2):
                off = j * 2048 + h * 32
                so = "0" if off < 4096 else f"s{sP}"
                g(f"buffer_load_dwordx4 {r(Q[j][h], 4)}, v{vQoff}, s[{sQ}:{sQ+3}], {so} offen offset:{off % 4096}{qnt}")
    g("s_barrier")
    g("s_branch L_compute2")
    emit_helper()
    if NP:
        g.label("L_poll_sleep")
        g(f"s_sub_u32 s{sSpin}, s{sSpin}, 1")
        g("s_cbranch_scc1 L_end")
        g("s_sleep 1")
        g.label("L_poll")
        g(f"ds_read_b32 v{vFl}, v{vL16}")
        g("s_waitcnt lgkmcnt(0)")
        g(f"v_readfirstlane_b32 s{sTmp}, v{vFl}")
        g("s_nop 0")
        g(f"s_cmp_ge_u32 s{sTmp}, s{sNeed}")
        g("s_cbranch_scc0 L_poll_sleep")
        g("s_setpc_b64 s[38:39]")
    g.label("L_compute2")
    g(f"v_and_b32 v{T+1}, 63, v0")
    g(f"s_and_b32 s{sTmp}, s{sTmp2}, 0xfffe0000")
    g(f"s_lshl_b32 s{sC}, s{sWave}, 13")
    g(f"s_add_u32 s{sTmp2}, s{sTmp2}, s{sC}")
    g(f"s_add_u32 s{sQ}, s4, s{sTmp2}")
    g(f"s_addc_u32 s{sQ+1}, s5, 0")
    g(f"s_mov_b32 s{sQ+2}, 8192")
    g(f"s_mov_b32 s{sQ+3}, 0x00020000")
    g(f"s_add_u32 s{sK}, s6, s{sTmp}")
    g(f"s_addc_u32 s{sK+1}, s7, 0")
    g(f"s_add_u32 s{sV}, s8, s{sTmp}")
    g(f"s_addc_u32 s{sV+1}, s9, 0")
    g(f"s_add_u32 s{sO}, s10, s{sTmp2}")
    g(f"s_addc_u32 s{sO+1}, s11, 0")
    for sr, n in ((sK, 131072), (sV, 131072), (sO, 8192)):
        g(f"s_mov_b32 s{sr+2}, {n}")
        g(f"s_mov_b32 s{sr+3}, 0x00020000")
    g(f"s_mov_b32 s{sSpin}, 0x40000")
    g(f"s_mov_b32 s{sP}, 4096")
    g(f"s_lshl_b32 s{sTmp}, s{sWave}, 8")
    g(f"s_add_u32 s{sTmp}, s{sTmp}, {PROG}")
    g(f"v_lshlrev_b32 v{vL16}, 4, v{T+1}")
    g(f"v_lshlrev_b32 v{vSy}, 2, v{T+1}")
    g(f"v_add_u32 v{vSy}, s{sTmp}, v{vSy}")
    g(f"v_mov_b32 v{vA}, v{vL16}")
    g(f"v_and_b32 v{T}, 15, v{T+1}")
    g(f"v_lshrrev_b32 v{T}, 2, v{T}")
    g(f"v_lshl_add_u32 v{T}, v{T+2}, 3, v{T}")
    g(f"v_lshlrev_b32 v{T}, 6, v{T}")
    g(f"v_lshrrev_b32 v{T+3}, 4, v{T+1}")
    g(f"v_and_b32 v{T+3}, 1, v{T+3}")
    g(f"v_lshl_add_u32 v{T}, v{T+3}, 5, v{T}")
    g(f"v_and_b32 v{T+3}, 3, v{T+1}")
    g(f"v_lshl_add_u32 v{T}, v{T+3}, 3, v{T}")
    g(f"v_add_u32 v{vT0}, {KB + FO}, v{T}")
    g(f"v_mov_b32 v{vT}, v{vT0}")
    g(f"v_mov_b32 v{T+3}, 0x3f803f80")
    g(f"v_mov_b32 v{IDX}, {U:#x}")
    if SPL:
        g(f"v_and_b32 v{T+2}, 15, v{T+1}")
        g(f"v_cmp_eq_u32 vcc, 0, v{T+2}")
        g(f"v_cmp_eq_u32 s[38:39], 4, v{T+2}")
        g("s_nop 0")
        g(f"v_cndmask_b32 v{ONES}, 0, v{T+3}, vcc")
        g(f"v_cndmask_b32 v{ONES+1}, 0, v{T+3}, vcc")
        g(f"v_cndmask_b32 v{ONES+2}, 0, v{T+3}, s[38:39]")
        g(f"v_cndmask_b32 v{ONES+3}, 0, v{T+3}, s[38:39]")
    else:
        g(f"v_lshrrev_b32 v{T+2}, 2, v{T+1}")
        g(f"v_and_b32 v{T+2}, 1, v{T+2}")
        g(f"v_cmp_eq_u32 vcc, 0, v{T+2}")
        g("s_nop 1")
        g(f"v_cndmask_b32 v{ONES}, 0, v{T+3}, vcc")
        g(f"v_cndmask_b32 v{ONES+1}, 0, v{T+3}, vcc")
        g(f"v_cndmask_b32 v{ONES+2}, v{T+3}, 0, vcc")
        g(f"v_cndmask_b32 v{ONES+3}, v{T+3}, 0, vcc")
    for j in range(4):
        for i in range(0, 16, 2): g(f"v_pk_mov_b32 {r(O[j]+i,2)}, 0, 0")
        for i in range(0, 4, 2): g(f"v_pk_mov_b32 {r(Lr[j]+i,2)}, 0, 0")
    cbits = f32bits(1.4426950408889634 * 32 ** -0.5)
    sCC = 72 if INSTR else 46
    g(f"s_mov_b32 s{sCC}, 0x{cbits:08x}")
    g(f"s_mov_b32 s{sCC+1}, 0x{cbits:08x}")
    g(f"s_mov_b32 s{sBase}, 0")
    g(f"s_mov_b32 s{sNeed}, 1")
    g(f"s_mov_b32 s{sBad}, 0")
    if INSTR == 1: g("s_memtime s[60:61]")
    g(f"s_waitcnt vmcnt({1 if PM == 0 else 0})")
    if INSTR == 1: g("s_memtime s[62:63]")
    def qscale(js):
        for j in js:
            for h in range(2):
                for i in range(4):
                    x = Q[j][h] + i
                    t = T + 2 * (i % 2)
                    g(f"v_lshlrev_b32 v{t}, 16, v{x}")
                    g(f"v_and_b32 v{t+1}, 0xffff0000, v{x}")
                    g(f"v_pk_mul_f32 {r(t,2)}, {r(t,2)}, s[{sCC}:{sCC+1}]")
                    g(f"v_cvt_pk_bf16_f32 v{x}, v{t}, v{t+1}")
    g(f"ds_read_b32 v{vFl}, v{vL16}")
    if QD: qload((2, 3))
    if OT == 1: g(f"buffer_load_dword v{CB[1]}, v{vQoff}, s[{sO}:{sO+3}], 0 offen")
    qscale((0, 1))
    slow = []
    def flagwait(name):
        if NP:
            g("s_waitcnt lgkmcnt(0)")
            g(f"v_readfirstlane_b32 s{sTmp}, v{vFl}")
            g("s_nop 0")
            g(f"s_cmp_ge_u32 s{sTmp}, s{sNeed}")
            g(f"s_cbranch_scc1 L_ok_{name}")
            g("s_call_b64 s[38:39], L_poll")
            g.label(f"L_ok_{name}")
            return
        g("s_waitcnt lgkmcnt(0)")
        g(f"v_readfirstlane_b32 s{sTmp}, v{vFl}")
        g("s_nop 0")
        g(f"s_cmp_ge_u32 s{sTmp}, s{sNeed}")
        g(f"s_cbranch_scc0 L_slow_{name}")
        g.label(f"L_ok_{name}")
        slow.append(name)
    if not DK: flagwait("k0")
    if INSTR == 1:
        g("s_memtime s[64:65]")
        g("s_waitcnt lgkmcnt(0)")
    inloop = [False]
    def kread1(kt, h):
        if (AB & 16) and inloop[0]: return
        g(f"ds_read_b128 {r(K[kt%2][h],4)}, v{vA} offset:{FO + (kt % CK) * 2048 + 1024*h}")
    def vread1(kt, i):
        if (AB & 16) and inloop[0]: return
        g(f"ds_read_b64_tr_b16 {r(V[kt%2][i//2] + 2*(i%2),2)}, v{vT} offset:{(kt % CK) * 2048 + (0, 256, 1024, 1280)[i]}")
    def qk(dst, kbuf, j, cin):
        g(f"v_mfma_f32_32x32x16_bf16 {r(dst,16)}, {r(K[kbuf][0],4)}, {r(Q[j][0],4)}, {cin}")
        g(f"v_mfma_f32_32x32x16_bf16 {r(dst,16)}, {r(K[kbuf][1],4)}, {r(Q[j][1],4)}, {r(dst,16)}")
    def pairmax(sa, sb_, cb):
        m = T
        g(f"v_max3_f32 v{m}, v{sa}, v{sa+1}, v{sa+2}")
        g(f"v_max3_f32 v{m+1}, v{sa+3}, v{sa+4}, v{sa+5}")
        g(f"v_max3_f32 v{m+2}, v{sa+6}, v{sa+7}, v{sa+8}")
        g(f"v_max3_f32 v{m+3}, v{sa+9}, v{sa+10}, v{sa+11}")
        g(f"v_max3_f32 v{m}, v{m}, v{sa+12}, v{sa+13}")
        g(f"v_max3_f32 v{m+1}, v{m+1}, v{sa+14}, v{sa+15}")
        for i in range(8):
            g(f"v_max3_f32 v{m+i%4}, v{m+i%4}, v{sb_+2*i}, v{sb_+2*i+1}")
        g(f"v_max3_f32 v{m}, v{m}, v{m+2}, v{m+3}")
        g(f"v_max_f32 v{m}, v{m}, v{m+1}")
        finish_max(m, cb)
    def finish_max(m, cb):
        g(f"v_mov_b32 v{m+1}, v{m}")
        g("s_nop 1")
        g(f"v_permlane32_swap_b32 v{m}, v{m+1}")
        g("s_nop 1")
        g(f"v_max_f32 v{m}, v{m}, v{m+1}")
        g(f"v_sub_f32 v{CB[cb]}, 0, v{m}")
        g(f"v_sub_f32 v{CB[cb]+1}, 0, v{m}")
        for i in range(2, 16, 2): g(f"v_pk_mov_b32 {r(CB[cb]+i,2)}, {r(CB[cb],2)}, {r(CB[cb],2)}")
    if DK:
        g("s_nop 0")
    else:
        kread1(0, 0); kread1(0, 1)
        for i in range(4): vread1(0, i)
        g("s_waitcnt lgkmcnt(4)")
    qk(S[0], 0, 0, "0"); qk(S[1], 0, 1, "0")
    g(f"ds_read_b32 v{vFl}, v{vL16}")
    g(f"s_mov_b32 s{sNeed}, 2")
    g("s_nop 7")
    pairmax(S[0], S[1], 0)
    g("s_nop 1")
    qk(S[0], 0, 0, r(CB[0], 16))
    flagwait("k1")
    if DK:
        for i in range(4): vread1(0, i)
    kread1(1, 0); kread1(1, 1)
    g(f"ds_read_b32 v{vFl}, v{vL16}")
    if INSTR:
        g("s_memtime s[46:47]")
        g("s_waitcnt lgkmcnt(0)")
    g("s_nop 7")
    g("s_nop 1")
    def pv(j, vb, half, sbuf):
        if ABL == 3:
            g(f"v_mfma_f32_32x32x16_bf16 {r(O[j],16)}, {r(V[vb][half],4)}, {r(Q[j][half], 4)}, {r(O[j],16)}"); g("s_nop 0"); g("s_nop 0"); return
        if ABL == 4 or (AB & 2):
            g("s_nop 2"); return
        g(f"v_smfmac_f32_32x32x32_bf16 {r(O[j],16)}, {r(V[vb][half],4)}, {r(sbuf + 8*half, 8)}, v{IDX}")
    def ls(j, half, sbuf):
        if ABL == 1 or (AB & 1):
            g("s_nop 2"); return
        g(f"v_smfmac_f32_16x16x64_bf16 {r(Lr[j],4)}, {r(ONES,4)}, {r(sbuf + 8*half, 8)}, v{IDX}")
    def region(name, order, prev_j, next_j, has_next, hooks=None, extra=None, skip_last2=False, lead2=False):
        NQ = len(order)
        NST = NQ * CK
        sched = {}
        def at(kt, jj, slot, fn): sched.setdefault((kt * NQ + jj, slot), []).append(fn)
        kj = 2 if NQ == 4 else 1
        for kt in range(CK):
            at(kt, 0, "pv2", lambda: g("s_waitcnt lgkmcnt(0)"))
            if kt + 1 < CK or has_next:
                if kt + 1 == CK: at(kt, 0, "qkb", lambda: g(f"v_add_u32 v{vT}, s{sBase}, v{vT0}"))
                if NQ == 4:
                    for i, (jj, sl) in enumerate(((0, "l2"), (0, "l1"), (1, "l2"), (1, "l1"))):
                        at(kt, jj, sl, lambda kt=kt, i=i: vread1(kt + 1, i))
                else:
                    for i, sl in enumerate(("l2", "l2", "l1", "l1")):
                        at(kt, 0, sl, lambda kt=kt, i=i: vread1(kt + 1, i))
            if kt + 2 < CK or has_next:
                if kt + 2 == CK: at(kt, kj, "qkb", lambda: g(f"v_add_u32 v{vA}, s{sBase}, v{vL16}"))
                at(kt, kj, "l2", lambda kt=kt: kread1(kt + 2, 0))
                at(kt, kj, "l1", lambda kt=kt: kread1(kt + 2, 1))
        if has_next and NQ == 4:
            at(CK - 3, 3, "l2", lambda: g(f"ds_read_b32 v{vFl}, v{vL16}"))
            at(CK - 2, 1, "qka", lambda: g(f"s_add_u32 s{sNeed}, s{sNeed}, 4"))
            at(CK - 2, 1, "qkb", lambda: g(f"s_add_u32 s{sBase}, s{sBase}, {CH}"))
            at(CK - 2, 1, "qkb", lambda: g(f"v_readfirstlane_b32 s{sTmp}, v{vFl}"))
            at(CK - 2, 1, "pv2", lambda: g(f"s_and_b32 s{sBase}, s{sBase}, {RING-1}"))
            def chk():
                g(f"s_cmp_ge_u32 s{sTmp}, s{sNeed}")
                g(f"s_cbranch_scc0 L_slow_{name}")
                g.label(f"L_ok_{name}")
                slow.append(name)
            at(CK - 2, 1, "pv1", chk)
            at(CK - 1, 3, "l2", lambda: g(f"ds_add_u32 v{vSy}, v{IDX}"))
        if has_next and NQ == 2:
            for kt in range(CK):
                need = kt + 3 if kt < CK - 1 else 2 * CK
                if kt > 0: at(kt - 1, 1, "pv1", lambda: g(f"ds_read_b32 v{vFl}, v{vL16}"))
                def chk(kt=kt, need=need):
                    if INSTR == 3 and kt == CK - 1: g("s_memtime s[60:61]")
                    g(f"s_mov_b32 s{sNeed}, {need}")
                    g(f"v_readfirstlane_b32 s{sTmp}, v{vFl}")
                    if kt == CK - 2: g(f"s_mov_b32 s{sBase}, {CH}")
                    else: g("s_nop 0")
                    g(f"s_cmp_ge_u32 s{sTmp}, s{sNeed}")
                    if NP:
                        g(f"s_cbranch_scc1 L_ok_{name}{kt}")
                        g("s_call_b64 s[38:39], L_poll")
                        g.label(f"L_ok_{name}{kt}")
                    else:
                        g(f"s_cbranch_scc0 L_slow_{name}{kt}")
                        g.label(f"L_ok_{name}{kt}")
                        slow.append(f"{name}{kt}")
                at(kt, 0, "pv1", chk)
            at(CK - 1, 1, "pv1", lambda: g(f"ds_add_u32 v{vSy}, v{IDX}"))
        if extra:
            for k, fns in extra.items(): sched.setdefault(k, []).extend(fns)
        for n in range(NST):
            kt, jj = n // NQ, n % NQ
            j = order[jj]
            sb = S[n % 4]; sprev = S[(n - 1) % 4]; snext = S[(n + 1) % 4]
            if n == 0: prev = None if prev_j is None else (CK - 1, prev_j)
            else: prev = ((n - 1) // NQ, order[(n - 1) % NQ])
            if n == NST - 1: nxt = None if next_j is None else (CK, next_j)
            else: nxt = ((n + 1) // NQ, order[(n + 1) % NQ])
            e = iter(range(16))
            def ex(k):
                for _ in range(k):
                    i = next(e); g(f"v_exp_f32 v{sb+i}, v{sb+i}" if (ABL != 5 and not (AB & 4)) else "v_nop\n    v_nop")
            def slot(nm):
                for fn in sched.get((n, nm), []): fn()
            g.c(f"---- {name} step {n}: kt={kt} j={j}")
            if n == 0 and lead2:
                g(f"v_exp_f32 v{sprev+14}, v{sprev+14}")
                g(f"v_exp_f32 v{sprev+15}, v{sprev+15}")
            if hooks and (n, "top") in hooks: hooks[(n, "top")]()
            if nxt and (AB & 8): g("s_nop 1")
            elif nxt and ABL == 2: g(f"v_mfma_f32_32x32x16_bf16 {r(snext,16)}, {r(K[nxt[0]%2][0],4)}, {r(Q[nxt[1]][0],4)}, 0")
            elif nxt: g(f"v_mfma_f32_32x32x16_bf16 {r(snext,16)}, {r(K[nxt[0]%2][0],4)}, {r(Q[nxt[1]][0],4)}, {r(CB[nxt[1]//2],16)}")
            slot("qka")
            ex(3)
            if nxt and (AB & 8): g("s_nop 1")
            elif nxt: g(f"v_mfma_f32_32x32x16_bf16 {r(snext,16)}, {r(K[nxt[0]%2][1],4)}, {r(Q[nxt[1]][1],4)}, {r(snext,16)}")
            slot("qkb")
            ex(3)
            if prev: pv(prev[1], prev[0] % 2, 1, sprev)
            slot("pv2")
            ex(3)
            if prev: ls(prev[1], 1, sprev)
            slot("l2")
            ex(2)
            pv(j, kt % 2, 0, sb)
            slot("pv1")
            ex(3)
            ls(j, 0, sb)
            slot("l1")
            if not (skip_last2 and n == NST - 1): ex(2)
            if hooks and (n, "end") in hooks: hooks[(n, "end")]()
    def q23():
        g.c("Q tiles 2,3: scale, stand-in max from chunk 1 tile 0")
        if INSTR == 3: g("s_memtime s[62:63]")
        g("s_waitcnt vmcnt(0)")
        if INSTR == 3: g("s_memtime s[64:65]")
        qscale((2, 3))
        g("s_nop 1")
        sa, sb_ = S[(QP + 1) % 4], S[(QP + 2) % 4]
        kb = ((QP + 1) // 2) % 2
        qk(sa, kb, 2, "0"); qk(sb_, kb, 3, "0")
        g("s_nop 7")
        g("s_nop 1")
        pairmax(sa, sb_, 1)
        g("s_nop 1")
    region("head", (0, 1), None, 2, True, hooks={(QP, "top"): q23},
           extra={(2 * CK - 1, "pv1"): [lambda: g(f"s_mov_b32 s{sIt}, 1")]}, skip_last2=True)
    if INSTR == 2: g("s_memtime s[60:61]")
    g.L.append(".p2align 6")
    g.label("L_loop")
    inloop[0] = True
    for u in range(UNR):
        ex_ = None
        if u == UNR - 1:
            ex_ = {(4 * CK - 1, "pv1"): [lambda: g(f"s_add_u32 s{sIt}, s{sIt}, {UNR}"), lambda: g(f"s_cmp_lt_u32 s{sIt}, {NCH}")]}
        region(f"body{u}", (2, 3, 0, 1), 1, 2, True, extra=ex_, skip_last2=True, lead2=True)
    if INSTR == 2:
        g("s_cbranch_scc0 L_exit")
        g(f"s_cmp_eq_u32 s{sIt}, {1 + UNR}")
        g("s_cbranch_scc0 L_loop")
        g("s_memtime s[62:63]")
        g("s_branch L_loop")
        g.label("L_exit")
        g("s_memtime s[64:65]")
    else:
        g("s_cbranch_scc1 L_loop")
    def check_store(js, bit, P, X):
        final_store(js, P, None)
        a, b = js
        for x, j in enumerate(js):
            for i in range(0, 16, 2):
                t = X + (i // 2) % 4
                if x == 0 and i < 8: g(f"v_maximum3_f32 v{t}, abs(v{O[j]+i}), abs(v{O[j]+i+1}), abs(v{O[j]+i+1})")
                else: g(f"v_maximum3_f32 v{t}, abs(v{O[j]+i}), abs(v{O[j]+i+1}), v{t}")
        g(f"v_maximum3_f32 v{X}, v{X}, v{X+1}, v{X+2}")
        g(f"v_maximum3_f32 v{X+4}, v{Lr[a]}, v{Lr[b]}, v{Lr[b]}")
        g(f"v_minimum3_f32 v{X+5}, v{Lr[a]}, v{Lr[b]}, v{Lr[b]}")
        g(f"v_maximum3_f32 v{X}, v{X}, v{X+3}, v{X+3}")
        g(f"v_mov_b32 v{X+1}, 0x71800000")
        g(f"v_mov_b32 v{X+2}, 0x{(127 - LO) << 23:08x}")
        g(f"v_mov_b32 v{X+3}, 0x7f800000")
        g(f"v_cmp_nlt_f32 s[38:39], v{X+4}, v{X+1}")
        g(f"v_cmp_nlt_f32 vcc, v{X}, v{X+3}")
        g(f"v_cmp_nge_f32 s[42:43], v{X+5}, v{X+2}")
        g("s_nop 1")
        g("s_or_b64 vcc, vcc, s[38:39]")
        g("s_or_b64 vcc, vcc, s[42:43]")
        g("s_cmp_lg_u64 vcc, 0")
        g(f"s_cselect_b32 s{sTmp}, {bit}, 0")
        g(f"s_or_b32 s{sBad}, s{sBad}, s{sTmp}")
    def final_store(js, P, soff):
        a, b = js
        for x, j in enumerate(js):
            if SPL:
                g(f"v_mov_b32 v{Lr[j]+1}, v{Lr[j]}")
                g("s_nop 1")
                g(f"v_permlane32_swap_b32 v{Lr[j]}, v{Lr[j]+1}")
                g("s_nop 0")
                g(f"v_rcp_f32 v{T+2*x}, v{Lr[j]}")
                g(f"v_rcp_f32 v{T+2*x+1}, v{Lr[j]}")
            else:
                g(f"v_rcp_f32 v{T+2*x}, v{Lr[j]}")
                g(f"v_rcp_f32 v{T+2*x+1}, v{Lr[j]+1}")
            g("s_nop 0")
            for i in range(0, 16, 2): g(f"v_pk_mul_f32 {r(O[j]+i,2)}, {r(O[j]+i,2)}, {r(T+2*x,2)}")
            PP = P + 8 * x
            for gq in range(4):
                g(f"v_cvt_pk_bf16_f32 v{PP+2*gq}, v{O[j]+4*gq}, v{O[j]+4*gq+1}")
                g(f"v_cvt_pk_bf16_f32 v{PP+2*gq+1}, v{O[j]+4*gq+2}, v{O[j]+4*gq+3}")
            g("s_nop 1")
            for pr in range(2):
                bb = PP + 4 * pr
                g(f"v_permlane32_swap_b32 v{bb}, v{bb+2}")
                g(f"v_permlane32_swap_b32 v{bb+1}, v{bb+3}")
            g("s_nop 1")
            if FL:
                for i in range(4): g(f"v_permlane16_swap_b32 v{PP+i}, v{PP+4+i}")
                g("s_nop 0")
            for pr in range(2):
                va = vFl if FL else vQoff
                po = pr * 1024 if FL else pr * 32
                if soff is None:
                    off = j * 2048 + po
                    so = "0" if off < 4096 else f"s{sP}"
                    g(f"buffer_store_dwordx4 {r(PP+4*pr,4)}, v{va}, s[{sO}:{sO+3}], {so} offen offset:{off % 4096}{STF}")
                else:
                    g(f"buffer_store_dwordx4 {r(PP+4*pr,4)}, v{va}, s[{sO}:{sO+3}], s{soff} offen offset:{x*2048 + po}")
    def store_addr():
        g(f"v_and_b32 v{vFl}, 0xf0, v{vL16}")
        g(f"v_lshlrev_b32 v{vFl}, 2, v{vFl}")
        g(f"v_and_b32 v{T}, 0x100, v{vL16}")
        g(f"v_lshrrev_b32 v{T}, 3, v{T}")
        g(f"v_or_b32 v{vFl}, v{vFl}, v{T}")
        g(f"v_and_b32 v{T}, 0x200, v{vL16}")
        g(f"v_lshrrev_b32 v{T}, 5, v{T}")
        g(f"v_or_b32 v{vFl}, v{vFl}, v{T}")
    def first_pair():
        if FL: store_addr()
        check_store((0, 1), 1, Q[0][0], CB[0])
    region("tail", (2, 3), 1, None, False, hooks={(1, "end"): first_pair}, lead2=True)
    g("s_nop 1")
    pv(3, (CK - 1) % 2, 1, S[3]); ls(3, 1, S[3])
    if INSTR: g("s_memtime s[48:49]")
    check_store((2, 3), 2, Q[2][0], CB[0])
    g(f"s_cmp_lg_u32 s{sBad}, 0")
    if not ABL: g("s_cbranch_scc1 L_fallback")
    g.label("L_done")
    if INSTR:
        g("s_waitcnt vmcnt(0)")
        g("s_memtime s[50:51]")
        g("s_memrealtime s[54:55]")
        g("s_waitcnt lgkmcnt(0)")
        g("s_mov_b32 s68, s56")
        g("s_mov_b32 s69, s57")
        g("s_mov_b32 s70, 0x100000")
        g("s_mov_b32 s71, 0x00020000")
        g(f"s_lshl_b32 s{sTmp}, s2, 2")
        g(f"s_add_u32 s{sTmp}, s{sTmp}, s{sWave}")
        g(f"s_lshl_b32 s{sTmp}, s{sTmp}, 6")
        g("s_getreg_b32 s58, hwreg(HW_REG_XCC_ID)")
        g("s_getreg_b32 s59, hwreg(HW_REG_HW_ID)")
        for i, sr in enumerate((44, 46, 48, 50, 52, 54, 58, 59, 60, 60, 62, 64)):
            g(f"v_mov_b32 v{40+i}, s{sr}")
        g(f"v_mov_b32 v39, s{sTmp}")
        g("s_mov_b64 exec, 1")
        g("buffer_store_dwordx4 v[40:43], v39, s[68:71], 0 offen")
        g("buffer_store_dwordx4 v[44:47], v39, s[68:71], 0 offen offset:16")
        g("buffer_store_dwordx4 v[48:51], v39, s[68:71], 0 offen offset:32")
        g("s_waitcnt vmcnt(0)")
    g("s_endpgm")
    for name in slow:
        g.label(f"L_slow_{name}")
        g(f"s_sub_u32 s{sSpin}, s{sSpin}, 1")
        g("s_cbranch_scc1 L_end")
        g("s_sleep 1")
        g(f"ds_read_b32 v{vFl}, v{vL16}")
        g("s_waitcnt lgkmcnt(0)")
        g(f"v_readfirstlane_b32 s{sTmp}, v{vFl}")
        g("s_nop 0")
        g(f"s_cmp_ge_u32 s{sTmp}, s{sNeed}")
        g(f"s_cbranch_scc0 L_slow_{name}")
        g(f"s_branch L_ok_{name}")
    g.label("L_fallback")
    g("s_waitcnt vmcnt(0) lgkmcnt(0)")
    g(f"s_lshl_b32 s{sBase}, s{sWave}, 11")
    g(f"s_add_u32 s{sBase}, s{sBase}, {FBL}")
    g(f"s_sub_u32 s{sTmp}, s{sBase}, {KB + FO}")
    g(f"v_add_u32 v{vT}, s{sTmp}, v{vT0}")
    g(f"s_mov_b32 s{sP}, 0")
    g.label("L_fb_pair")
    g(f"s_and_b32 s{sTmp}, s{sBad}, 1")
    g("s_cbranch_scc0 L_fb_next")
    for j in range(2):
        for h in range(2):
            g(f"buffer_load_dwordx4 {r(Q[j][h], 4)}, v{vQoff}, s[{sQ}:{sQ+3}], s{sP} offen offset:{j*2048 + h*32}")
    g("s_waitcnt vmcnt(0)")
    qscale((0, 1))
    M0r, M1r = S[2], S[2] + 4
    g(f"v_mov_b32 v{M0r}, 0xff800000")
    g(f"v_mov_b32 v{M1r}, 0xff800000")
    g(f"s_mov_b32 s{sGoff}, 0")
    g.label("L_fb_max")
    g(f"buffer_load_dwordx4 {r(K[0][0],4)}, v{vQoff}, s[{sK}:{sK+3}], s{sGoff} offen")
    g(f"buffer_load_dwordx4 {r(K[0][1],4)}, v{vQoff}, s[{sK}:{sK+3}], s{sGoff} offen offset:32")
    g("s_waitcnt vmcnt(0)")
    qk(S[0], 0, 0, "0"); qk(S[1], 0, 1, "0")
    g("s_nop 15")
    for j, m in ((0, M0r), (1, M1r)):
        for i in range(0, 16, 2):
            g(f"v_max3_f32 v{m}, v{m}, v{S[j]+i}, v{S[j]+i+1}")
    g(f"s_add_u32 s{sGoff}, s{sGoff}, 2048")
    g(f"s_cmp_lt_u32 s{sGoff}, 131072")
    g("s_cbranch_scc1 L_fb_max")
    for j, m in ((0, M0r), (1, M1r)):
        finish_max(m, j)
        for i in range(16): g(f"v_mov_b32 v{O[j]+i}, 0")
        for i in range(4): g(f"v_mov_b32 v{Lr[j]+i}, 0")
    g(f"s_mov_b32 s{sGoff}, 0")
    g.label("L_fb_loop")
    g(f"buffer_load_dwordx4 {r(K[0][0],4)}, v{vQoff}, s[{sK}:{sK+3}], s{sGoff} offen")
    g(f"buffer_load_dwordx4 {r(K[0][1],4)}, v{vQoff}, s[{sK}:{sK+3}], s{sGoff} offen offset:32")
    g(f"s_mov_b32 m0, s{sBase}")
    g("s_nop 0")
    g(f"buffer_load_dwordx4 v{vL16}, s[{sV}:{sV+3}], s{sGoff} offen lds")
    g(f"buffer_load_dwordx4 v{vL16}, s[{sV}:{sV+3}], s{sGoff} offen offset:1024 lds")
    g("s_waitcnt vmcnt(0)")
    for i in range(4): vread1(0, i)
    qk(S[0], 0, 0, r(CB[0], 16)); qk(S[1], 0, 1, r(CB[1], 16))
    g("s_nop 15")
    for j in range(2):
        for i in range(16): g(f"v_exp_f32 v{S[j]+i}, v{S[j]+i}")
    g("s_waitcnt lgkmcnt(0)")
    g("s_nop 1")
    for j in range(2):
        pv(j, 0, 0, S[j]); pv(j, 0, 1, S[j]); ls(j, 0, S[j]); ls(j, 1, S[j])
    g(f"s_add_u32 s{sGoff}, s{sGoff}, 2048")
    g(f"s_cmp_lt_u32 s{sGoff}, 131072")
    g("s_cbranch_scc1 L_fb_loop")
    g("s_nop 15")
    g("s_nop 3")
    final_store((0, 1), S[2], sP)
    g("s_waitcnt vmcnt(0)")
    g.label("L_fb_next")
    g(f"s_lshr_b32 s{sBad}, s{sBad}, 1")
    g(f"s_add_u32 s{sP}, s{sP}, 4096")
    g(f"s_cmp_lt_u32 s{sP}, 8192")
    g("s_cbranch_scc1 L_fb_pair")
    g("s_branch L_done")
    g.label("L_end")
    g("s_endpgm")
    hdr = open("cdna_kernels/" + NAME + ".s.ref").read().split("; Override launch")[0]
    out = hdr + f"""; Override launch geometry by editing the next line (default: block=256,
; grid=ceil(out_elems/256), lds=0). Harness parses it; keep it on one line.
; @launch grid=(256,1,1) block=({384 if PM == 3 else 320},1,1) lds={LDS}
; -----------------------------------------------------------------------------------------------
; Fused attention forward, B*H=64 heads, S=2048, Dh=32, bf16.  One workgroup = 512 queries of one head.
;   waves 0-3 : compute, one per SIMD, four 32-query tiles each
;   wave  4   : loader, streams K/V key tiles into an 8-slot LDS ring with LDS-DMA
;   sync      : two LDS counters (READY = key tiles landed, PROG = chunks consumed); one s_barrier after their init
; Per 32x32 score tile:  S^T = K*Q^T - m  (2 MFMA, Q pre-scaled by log2(e)/sqrt(Dh), -m enters through the C operand),
;   P = exp2(S^T) in place (16 v_exp_f32),  O^T += V^T*P^T and l += sum(P) by sparse MFMAs whose index selects the
;   high (bf16) half of every fp32 P register, so numerator and denominator use the same bf16 P.
; Softmax guard: m is the true max of one early key tile for each query pair.  After the pass every row is checked
;   (2^-40 <= l < 2^100 and finite outputs); a pair that fails is recomputed at L_fallback with the true row max over
;   all keys (two passes), so the result never depends on that stand-in being good.
; q-tiles 2,3 start one chunk later than tiles 0,1 and wrap around, which overlaps Q loads / O stores with compute.
; Generated by my own script (gen/gen11.py).
; -----------------------------------------------------------------------------------------------
.amdgcn_target "amdgcn-amd-amdhsa--gfx950"
.text
.globl {NAME}_kernel
.p2align 8
.type {NAME}_kernel,@function
{NAME}_kernel:
{g.text()}
.section .rodata,"a"
.p2align 6
.amdhsa_kernel {NAME}_kernel
  .amdhsa_next_free_vgpr 256
  .amdhsa_next_free_sgpr {80 if INSTR else 48}
  .amdhsa_accum_offset 256
  .amdhsa_group_segment_fixed_size 0
  .amdhsa_kernarg_size 48
  .amdhsa_user_sgpr_count 2
  .amdhsa_user_sgpr_kernarg_segment_ptr 1
  .amdhsa_system_sgpr_workgroup_id_x 1
.end_amdhsa_kernel
"""
    return out

if __name__ == "__main__":
    out = sys.argv[1] if len(sys.argv) > 1 else f"cdna_kernels/{NAME}.s"
    kw = dict(a.split("=") for a in sys.argv[2:])
    kw = {k: int(v) for k, v in kw.items()}
    open(out, "w").write(gen(**kw))
```

```python
import sys, struct

NAME = "standalone__fused_io_aware_attn__prompt"
def f32bits(x): return struct.unpack("<I", struct.pack("<f", x))[0]

class Gen:
    def __init__(s): s.L = []
    def __call__(s, txt): s.L.append("    " + txt)
    def label(s, l): s.L.append(l + ":")
    def c(s, t): s.L.append("    ; " + t)
    def text(s): return "\n".join(s.L)

def gen(NS=8, R=4, INSTR=0, SLP=12, UNR=1, LO=40, ABL=0, PF=2, W=8, B0=2, ST=1, OT=0, FL=1, PFW=256, QNT=1, KNT=0, AB=0, QD=1, GROW=1, PFE=0, SPL=1, QP=4, DK=0, NP=1, XC=0, PM=1, SNAP=0, OFF=-48, HI=120, OB=0):
    if OFF > 0: LO = LO + OFF
    if AB: ABL = 99
    STF = ['', ' sc1', ' sc0 sc1', ' nt', ' sc1 nt', ' sc0 sc1 nt'][ST]
    g = Gen()
    CK = 4
    D = 2
    KB = CK * 2048
    CH = 2 * KB
    NCH = 64 // CK
    NCHT = NCH + 1
    RING = NS * CH
    FO = 2048
    READY = 0
    PROG = 1024
    FBL = RING + 2048
    LDS = RING + 2048 + 8192
    U = 0xdddd
    assert R >= D + 1 and R <= NS - 1 and (NCH - 1) % UNR == 0
    S = [0, 16, 32, 48]
    CB = [64, 80]
    O = [96, 112, 128, 144]
    Q = [[160 + 8 * j + 4 * h for h in range(2)] for j in range(4)]
    K = [[192 + 8 * b + 4 * h for h in range(2)] for b in range(2)]
    V = [[208 + 8 * b + 4 * h for h in range(2)] for b in range(2)]
    Lr = [224 + 4 * j for j in range(4)]
    ONES, IDX = 240, 244
    vA, vL16, vSy, vFl, vQoff, vT, vT0 = 245, 246, 247, 248, 249, 250, 251
    T = 252
    def r(b, n): return f"v[{b}:{b+n-1}]"
    sK, sV, sQ, sO = 12, 16, 20, 24
    sWave, sHead, sQB = 28, 29, 30
    sGoff, sBase, sIt, sTmp, sC = 31, 32, 33, 34, 35
    sTmp2, sNeed, sBad, sP, sSpin = 36, 37, 40, 41, 3
    def emit_helper():
        NT = NCHT * CK
        P1 = 4 * (R + 1)
        hZ, hPa, hP, hOne, hOne2, hOne3 = 8, 12, 13, 14, 5, 6
        sX, sM, sG = 32, 33, 35
        knt = ' nt' if KNT else ''
        def call(): g("s_call_b64 s[38:39], L_issue")
        def pub(reg): g(f"ds_add_u32 v{vL16}, v{reg}")
        g.label("L_helper")
        g(f"v_and_b32 v{T+1}, 63, v0")
        g(f"s_and_b32 s{sTmp}, s{sTmp2}, 0xfffe0000")
        g(f"v_lshlrev_b32 v{vL16}, 4, v{T+1}")
        g(f"v_add_u32 v{vFl}, 32, v{vQoff}")
        if XC & 2:
            g(f"v_mov_b32 v{vQoff}, v{vL16}")
            g(f"v_add_u32 v{vFl}, 1024, v{vL16}")
        for sr, n in ((sK, 131072), (sV, 131072)):
            g(f"s_mov_b32 s{sr+2}, {n}")
            g(f"s_mov_b32 s{sr+3}, 0x00020000")
        g(f"s_mov_b32 s{sX}, 0")
        g("s_waitcnt lgkmcnt(0)")
        g(f"s_add_u32 s{sK}, s6, s{sTmp}")
        g(f"s_addc_u32 s{sK+1}, s7, 0")
        g(f"s_add_u32 s{sV}, s8, s{sTmp}")
        g(f"s_addc_u32 s{sV+1}, s9, 0")
        call()
        g("s_branch L_h2")
        g.label("L_issue")
        g(f"s_and_b32 s{sM}, s{sX}, {4*(NS-1)}")
        g(f"s_lshl_b32 s{sM}, s{sM}, {CH.bit_length()-1-2}")
        g(f"s_and_b32 s{sTmp}, s{sX}, 3")
        g(f"s_lshl_b32 s{sTmp}, s{sTmp}, 11")
        g(f"s_add_u32 s{sM}, s{sM}, s{sTmp}")
        g(f"s_add_u32 s{sM}, s{sM}, {FO}")
        g(f"s_mov_b32 m0, s{sM}")
        g(f"s_and_b32 s{sG}, s{sX}, 63")
        g(f"s_lshl_b32 s{sG}, s{sG}, 11")
        g(f"buffer_load_dwordx4 v{vQoff}, s[{sK}:{sK+3}], s{sG} offen{knt} lds")
        g(f"s_add_u32 s{sTmp}, s{sM}, 1024")
        g(f"s_mov_b32 m0, s{sTmp}")
        g(f"s_add_u32 s{sTmp}, s{sM}, {KB}")
        g(f"buffer_load_dwordx4 v{vFl}, s[{sK}:{sK+3}], s{sG} offen{knt} lds")
        g(f"s_mov_b32 m0, s{sTmp}")
        g(f"s_add_u32 s{sX}, s{sX}, 1")
        g(f"buffer_load_dwordx4 v{vL16}, s[{sV}:{sV+3}], s{sG} offen{knt} lds")
        g(f"buffer_load_dwordx4 v{vL16}, s[{sV}:{sV+3}], s{sG} offen offset:1024{knt} lds")
        g("s_setpc_b64 s[38:39]")
        g.label("L_h2")
        for i in range(4): g(f"v_mov_b32 v{hZ+i}, 0")
        g(f"ds_write_b128 v{vL16}, {r(hZ,4)}")
        g(f"ds_write_b128 v{vL16}, {r(hZ,4)} offset:1024")
        call()
        g("s_waitcnt lgkmcnt(0)")
        g("s_barrier")
        W0 = 4 if GROW else W
        for _ in range(W0 - 2): call()
        g(f"v_and_b32 v{hP}, 3, v{T+1}")
        g(f"v_lshlrev_b32 v{hPa}, 8, v{hP}")
        g(f"v_mov_b32 v{hOne}, 1")
        g(f"v_mov_b32 v{hOne2}, {W-1}")
        g(f"v_mov_b32 v{hOne3}, 4")
        g(f"s_mov_b32 s{sSpin}, 0x40000")
        for w in range(W0, W):
            g(f"s_waitcnt vmcnt({4*(w-1)})")
            pub(hOne)
            call(); call()
        g.label("L_hph1")
        g(f"s_waitcnt vmcnt({4*(W-1)})")
        pub(hOne)
        g(f"s_cmp_lt_u32 s{sX}, {P1}")
        g("s_cbranch_scc0 L_hdrain")
        call()
        g("s_branch L_hph1")
        g.label("L_hdrain")
        g("s_waitcnt vmcnt(0)")
        pub(hOne2)
        if OT == 2:
            g(f"s_and_b32 s{sTmp}, s2, 7")
            g(f"s_lshr_b32 s{sTmp2}, s2, 5")
            g(f"s_lshl_b32 s{sTmp}, s{sTmp}, 3")
            g(f"s_add_u32 s{sTmp}, s{sTmp}, s{sTmp2}")
            g(f"s_lshl_b32 s{sTmp}, s{sTmp}, 17")
            g(f"s_add_u32 s{sO}, s10, s{sTmp}")
            g(f"s_addc_u32 s{sO+1}, s11, 0")
            g(f"s_mov_b32 s{sO+2}, 131072")
            g(f"s_mov_b32 s{sO+3}, 0x00020000")
            g(f"buffer_load_dword v30, v{vL16}, s[{sO}:{sO+3}], 0 offen")
        g.label("L_hchunk")
        g(f"s_lshr_b32 s{sTmp2}, s{sX}, 2")
        g(f"s_sub_u32 s{sTmp2}, s{sTmp2}, {R}")
        g(f"s_mul_i32 s{sTmp2}, s{sTmp2}, {U}")
        g.label("L_hpoll")
        g(f"ds_read_b32 v{hP}, v{hPa} offset:{PROG}")
        g("s_waitcnt lgkmcnt(0)")
        g("s_setprio 3")
        g(f"v_cmp_gt_u32 vcc, s{sTmp2}, v{hP}")
        g("s_setprio 0")
        g("s_nop 0")
        g("s_cmp_eq_u64 vcc, 0")
        g("s_cbranch_scc1 L_hgo")
        g(f"s_sleep {SLP}")
        g(f"s_sub_u32 s{sSpin}, s{sSpin}, 1")
        g("s_cbranch_scc0 L_hpoll")
        g("s_endpgm")
        g.label("L_hgo")
        for _ in range(4): call()
        g("s_waitcnt vmcnt(0)")
        pub(hOne3)
        g(f"s_cmp_lt_u32 s{sX}, {NT}")
        g("s_cbranch_scc1 L_hchunk")
        g("s_waitcnt lgkmcnt(0)")
        g("s_endpgm")
    g("s_lshr_b32 s3, s2, 8")
    g("s_cbranch_scc1 L_end")
    g("s_load_dwordx4 s[4:7], s[0:1], 0")
    g("s_load_dwordx4 s[8:11], s[0:1], 16")
    if INSTR:
        g("s_memtime s[44:45]")
        g("s_memrealtime s[52:53]")
        g("s_load_dwordx2 s[56:57], s[0:1], 40")
    if PM == 3:
        g(f"v_lshrrev_b32 v{T}, 6, v0")
        g("s_getpc_b64 s[42:43]")
        g(f"v_readfirstlane_b32 s{sWave}, v{T}")
        g(f"v_and_b32 v{T+1}, 63, v0")
        g(f"s_cmp_eq_u32 s{sWave}, 5")
        g("s_cbranch_scc0 L_nopf")
        g(f"v_mul_u32_u24 v{T+1}, 64, v{T+1}")
        g(f"global_load_dword v16, v{T+1}, s[42:43]")
        g(f"v_add_u32 v{T+2}, 4096, v{T+1}")
        g(f"global_load_dword v17, v{T+2}, s[42:43]")
        g(f"global_load_dword v18, v{T+2}, s[42:43] offset:2048")
        g("s_endpgm")
        g.label("L_nopf")
    if PM == 1:
        g("s_getpc_b64 s[42:43]")
        g(f"v_lshlrev_b32 v{T}, 5, v0")
        g(f"global_load_dword v16, v{T}, s[42:43]")
    if PM == 2:
        g("s_getpc_b64 s[42:43]")
        g(f"v_lshlrev_b32 v{T}, 4, v0")
        g(f"global_load_dwordx4 v[16:19], v{T}, s[42:43]")
        g(f"v_add_u32 v{T+1}, 5120, v{T}")
        g(f"global_load_dwordx4 v[20:23], v{T+1}, s[42:43]")
    g(f"s_and_b32 s{sTmp}, s2, 7")
    g(f"s_lshl_b32 s{sTmp}, s{sTmp}, 20")
    g(f"s_lshr_b32 s{sTmp2}, s2, 3")
    g(f"s_lshl_b32 s{sTmp2}, s{sTmp2}, 15")
    g(f"s_or_b32 s{sTmp2}, s{sTmp2}, s{sTmp}")
    g(f"v_and_b32 v{T}, 31, v0")
    g(f"v_lshlrev_b32 v{vQoff}, 6, v{T}")
    g(f"v_bfe_u32 v{T+2}, v0, 5, 1")
    g(f"v_lshl_or_b32 v{vQoff}, v{T+2}, 4, v{vQoff}")
    g(f"v_lshrrev_b32 v{T}, 6, v0")
    g(f"v_lshl_add_u32 v{T+3}, v{T}, 13, v{vQoff}")
    g(f"v_readfirstlane_b32 s{sWave}, v{T}")
    g(f"v_add_u32 v{T+3}, s{sTmp2}, v{T+3}")
    g(f"s_cmp_eq_u32 s{sWave}, 4")
    g("s_cbranch_scc1 L_helper")
    g("s_waitcnt lgkmcnt(0)")
    qnt = ' nt' if QNT else ''
    for j in range(2):
        for h in range(2):
            g(f"global_load_dwordx4 {r(Q[j][h], 4)}, v{T+3}, s[4:5] offset:{j*2048 + h*32}{qnt}")
    def prefetch_code():
        g("s_getpc_b64 s[42:43]")
        g(f"v_mul_u32_u24 v{T}, 40, v0")
        g(f"global_load_dword v{CB[1]}, v{T}, s[42:43]")
    if PM == 0: prefetch_code()
    def qload(js):
        for j in js:
            for h in range(2):
                off = j * 2048 + h * 32
                so = "0" if off < 4096 else f"s{sP}"
                g(f"buffer_load_dwordx4 {r(Q[j][h], 4)}, v{vQoff}, s[{sQ}:{sQ+3}], {so} offen offset:{off % 4096}{qnt}")
    g("s_barrier")
    g("s_branch L_compute2")
    emit_helper()
    if NP:
        g.label("L_poll_sleep")
        g(f"s_sub_u32 s{sSpin}, s{sSpin}, 1")
        g("s_cbranch_scc1 L_end")
        g("s_sleep 1")
        g.label("L_poll")
        g(f"ds_read_b32 v{vFl}, v{vL16}")
        g("s_waitcnt lgkmcnt(0)")
        g(f"v_readfirstlane_b32 s{sTmp}, v{vFl}")
        g("s_nop 0")
        g(f"s_cmp_ge_u32 s{sTmp}, s{sNeed}")
        g("s_cbranch_scc0 L_poll_sleep")
        g("s_setpc_b64 s[38:39]")
    g.label("L_compute2")
    g(f"v_and_b32 v{T+1}, 63, v0")
    g(f"s_and_b32 s{sTmp}, s{sTmp2}, 0xfffe0000")
    g(f"s_lshl_b32 s{sC}, s{sWave}, 13")
    g(f"s_add_u32 s{sTmp2}, s{sTmp2}, s{sC}")
    g(f"s_add_u32 s{sQ}, s4, s{sTmp2}")
    g(f"s_addc_u32 s{sQ+1}, s5, 0")
    g(f"s_mov_b32 s{sQ+2}, 8192")
    g(f"s_mov_b32 s{sQ+3}, 0x00020000")
    g(f"s_add_u32 s{sK}, s6, s{sTmp}")
    g(f"s_addc_u32 s{sK+1}, s7, 0")
    g(f"s_add_u32 s{sV}, s8, s{sTmp}")
    g(f"s_addc_u32 s{sV+1}, s9, 0")
    g(f"s_add_u32 s{sO}, s10, s{sTmp2}")
    g(f"s_addc_u32 s{sO+1}, s11, 0")
    for sr, n in ((sK, 131072), (sV, 131072), (sO, 8192)):
        g(f"s_mov_b32 s{sr+2}, {n}")
        g(f"s_mov_b32 s{sr+3}, 0x00020000")
    g(f"s_mov_b32 s{sSpin}, 0x40000")
    g(f"s_mov_b32 s{sP}, 4096")
    g(f"s_lshl_b32 s{sTmp}, s{sWave}, 8")
    g(f"s_add_u32 s{sTmp}, s{sTmp}, {PROG}")
    g(f"v_lshlrev_b32 v{vL16}, 4, v{T+1}")
    g(f"v_lshlrev_b32 v{vSy}, 2, v{T+1}")
    g(f"v_add_u32 v{vSy}, s{sTmp}, v{vSy}")
    g(f"v_mov_b32 v{vA}, v{vL16}")
    g(f"v_and_b32 v{T}, 15, v{T+1}")
    g(f"v_lshrrev_b32 v{T}, 2, v{T}")
    g(f"v_lshl_add_u32 v{T}, v{T+2}, 3, v{T}")
    g(f"v_lshlrev_b32 v{T}, 6, v{T}")
    g(f"v_lshrrev_b32 v{T+3}, 4, v{T+1}")
    g(f"v_and_b32 v{T+3}, 1, v{T+3}")
    g(f"v_lshl_add_u32 v{T}, v{T+3}, 5, v{T}")
    g(f"v_and_b32 v{T+3}, 3, v{T+1}")
    g(f"v_lshl_add_u32 v{T}, v{T+3}, 3, v{T}")
    g(f"v_add_u32 v{vT0}, {KB + FO}, v{T}")
    g(f"v_mov_b32 v{vT}, v{vT0}")
    g(f"v_mov_b32 v{T+3}, 0x3f803f80")
    g(f"v_mov_b32 v{IDX}, {U:#x}")
    if SPL:
        g(f"v_and_b32 v{T+2}, 15, v{T+1}")
        g(f"v_cmp_eq_u32 vcc, 0, v{T+2}")
        g(f"v_cmp_eq_u32 s[38:39], 4, v{T+2}")
        g("s_nop 0")
        g(f"v_cndmask_b32 v{ONES}, 0, v{T+3}, vcc")
        g(f"v_cndmask_b32 v{ONES+1}, 0, v{T+3}, vcc")
        g(f"v_cndmask_b32 v{ONES+2}, 0, v{T+3}, s[38:39]")
        g(f"v_cndmask_b32 v{ONES+3}, 0, v{T+3}, s[38:39]")
    else:
        g(f"v_lshrrev_b32 v{T+2}, 2, v{T+1}")
        g(f"v_and_b32 v{T+2}, 1, v{T+2}")
        g(f"v_cmp_eq_u32 vcc, 0, v{T+2}")
        g("s_nop 1")
        g(f"v_cndmask_b32 v{ONES}, 0, v{T+3}, vcc")
        g(f"v_cndmask_b32 v{ONES+1}, 0, v{T+3}, vcc")
        g(f"v_cndmask_b32 v{ONES+2}, v{T+3}, 0, vcc")
        g(f"v_cndmask_b32 v{ONES+3}, v{T+3}, 0, vcc")
    for j in range(4):
        if OB:
            for i in range(16): g(f"v_mov_b32 v{O[j]+i}, 0x{(127 + OB) << 23 | 0x400000:08x}")
        else:
            for i in range(0, 16, 2): g(f"v_pk_mov_b32 {r(O[j]+i,2)}, 0, 0")
        for i in range(0, 4, 2): g(f"v_pk_mov_b32 {r(Lr[j]+i,2)}, 0, 0")
    cbits = f32bits(1.4426950408889634 * 32 ** -0.5)
    sCC = 72 if INSTR else 46
    g(f"s_mov_b32 s{sCC}, 0x{cbits:08x}")
    g(f"s_mov_b32 s{sCC+1}, 0x{cbits:08x}")
    g(f"s_mov_b32 s{sBase}, 0")
    g(f"s_mov_b32 s{sNeed}, 1")
    g(f"s_mov_b32 s{sBad}, 0")
    if INSTR == 1: g("s_memtime s[60:61]")
    g(f"s_waitcnt vmcnt({1 if PM == 0 else 0})")
    if INSTR == 1: g("s_memtime s[62:63]")
    def qscale(js):
        for j in js:
            for h in range(2):
                for i in range(4):
                    x = Q[j][h] + i
                    t = T + 2 * (i % 2)
                    g(f"v_lshlrev_b32 v{t}, 16, v{x}")
                    g(f"v_and_b32 v{t+1}, 0xffff0000, v{x}")
                    g(f"v_pk_mul_f32 {r(t,2)}, {r(t,2)}, s[{sCC}:{sCC+1}]")
                    g(f"v_cvt_pk_bf16_f32 v{x}, v{t}, v{t+1}")
    g(f"ds_read_b32 v{vFl}, v{vL16}")
    if QD: qload((2, 3))
    if OT == 1: g(f"buffer_load_dword v{CB[1]}, v{vQoff}, s[{sO}:{sO+3}], 0 offen")
    qscale((0, 1))
    slow = []
    def flagwait(name):
        if NP:
            g("s_waitcnt lgkmcnt(0)")
            g(f"v_readfirstlane_b32 s{sTmp}, v{vFl}")
            g("s_nop 0")
            g(f"s_cmp_ge_u32 s{sTmp}, s{sNeed}")
            g(f"s_cbranch_scc1 L_ok_{name}")
            g("s_call_b64 s[38:39], L_poll")
            g.label(f"L_ok_{name}")
            return
        g("s_waitcnt lgkmcnt(0)")
        g(f"v_readfirstlane_b32 s{sTmp}, v{vFl}")
        g("s_nop 0")
        g(f"s_cmp_ge_u32 s{sTmp}, s{sNeed}")
        g(f"s_cbranch_scc0 L_slow_{name}")
        g.label(f"L_ok_{name}")
        slow.append(name)
    if not DK: flagwait("k0")
    if INSTR == 1:
        g("s_memtime s[64:65]")
        g("s_waitcnt lgkmcnt(0)")
    inloop = [False]
    def kread1(kt, h):
        if (AB & 16) and inloop[0]: return
        g(f"ds_read_b128 {r(K[kt%2][h],4)}, v{vA} offset:{FO + (kt % CK) * 2048 + 1024*h}")
    def vread1(kt, i):
        if (AB & 16) and inloop[0]: return
        g(f"ds_read_b64_tr_b16 {r(V[kt%2][i//2] + 2*(i%2),2)}, v{vT} offset:{(kt % CK) * 2048 + (0, 256, 1024, 1280)[i]}")
    def qk(dst, kbuf, j, cin):
        g(f"v_mfma_f32_32x32x16_bf16 {r(dst,16)}, {r(K[kbuf][0],4)}, {r(Q[j][0],4)}, {cin}")
        g(f"v_mfma_f32_32x32x16_bf16 {r(dst,16)}, {r(K[kbuf][1],4)}, {r(Q[j][1],4)}, {r(dst,16)}")
    def pairmax(sa, sb_, cb):
        m = T
        g(f"v_max3_f32 v{m}, v{sa}, v{sa+1}, v{sa+2}")
        g(f"v_max3_f32 v{m+1}, v{sa+3}, v{sa+4}, v{sa+5}")
        g(f"v_max3_f32 v{m+2}, v{sa+6}, v{sa+7}, v{sa+8}")
        g(f"v_max3_f32 v{m+3}, v{sa+9}, v{sa+10}, v{sa+11}")
        g(f"v_max3_f32 v{m}, v{m}, v{sa+12}, v{sa+13}")
        g(f"v_max3_f32 v{m+1}, v{m+1}, v{sa+14}, v{sa+15}")
        for i in range(8):
            g(f"v_max3_f32 v{m+i%4}, v{m+i%4}, v{sb_+2*i}, v{sb_+2*i+1}")
        g(f"v_max3_f32 v{m}, v{m}, v{m+2}, v{m+3}")
        g(f"v_max_f32 v{m}, v{m}, v{m+1}")
        finish_max(m, cb, SNAP, OFF)
    def finish_max(m, cb, snap=0, off=0):
        g(f"v_mov_b32 v{m+1}, v{m}")
        g("s_nop 1")
        g(f"v_permlane32_swap_b32 v{m}, v{m+1}")
        g("s_nop 1")
        g(f"v_max_f32 v{m}, v{m}, v{m+1}")
        if off: g(f"v_add_f32 v{m}, 0x{f32bits(float(off)):08x}, v{m}")
        if snap:
            g(f"v_mov_b32 v{m+1}, 0x41800000")
            g(f"v_cmp_lt_f32 vcc, abs(v{m}), v{m+1}")
            g("s_nop 1")
            g(f"v_cndmask_b32 v{m}, v{m}, 0, vcc")
        g(f"v_sub_f32 v{CB[cb]}, 0, v{m}")
        g(f"v_sub_f32 v{CB[cb]+1}, 0, v{m}")
        for i in range(2, 16, 2): g(f"v_pk_mov_b32 {r(CB[cb]+i,2)}, {r(CB[cb],2)}, {r(CB[cb],2)}")
    if DK:
        g("s_nop 0")
    else:
        kread1(0, 0); kread1(0, 1)
        for i in range(4): vread1(0, i)
        g("s_waitcnt lgkmcnt(4)")
    qk(S[0], 0, 0, "0"); qk(S[1], 0, 1, "0")
    g(f"ds_read_b32 v{vFl}, v{vL16}")
    g(f"s_mov_b32 s{sNeed}, 2")
    g("s_nop 7")
    pairmax(S[0], S[1], 0)
    g("s_nop 1")
    qk(S[0], 0, 0, r(CB[0], 16))
    flagwait("k1")
    if DK:
        for i in range(4): vread1(0, i)
    kread1(1, 0); kread1(1, 1)
    g(f"ds_read_b32 v{vFl}, v{vL16}")
    if INSTR:
        g("s_memtime s[46:47]")
        g("s_waitcnt lgkmcnt(0)")
    g("s_nop 7")
    g("s_nop 1")
    def pv(j, vb, half, sbuf):
        if ABL == 3:
            g(f"v_mfma_f32_32x32x16_bf16 {r(O[j],16)}, {r(V[vb][half],4)}, {r(Q[j][half], 4)}, {r(O[j],16)}"); g("s_nop 0"); g("s_nop 0"); return
        if ABL == 4 or (AB & 2):
            g("s_nop 2"); return
        g(f"v_smfmac_f32_32x32x32_bf16 {r(O[j],16)}, {r(V[vb][half],4)}, {r(sbuf + 8*half, 8)}, v{IDX}")
    def ls(j, half, sbuf):
        if ABL == 1 or (AB & 1):
            g("s_nop 2"); return
        g(f"v_smfmac_f32_16x16x64_bf16 {r(Lr[j],4)}, {r(ONES,4)}, {r(sbuf + 8*half, 8)}, v{IDX}")
    def region(name, order, prev_j, next_j, has_next, hooks=None, extra=None, skip_last2=False, lead2=False):
        NQ = len(order)
        NST = NQ * CK
        sched = {}
        def at(kt, jj, slot, fn): sched.setdefault((kt * NQ + jj, slot), []).append(fn)
        kj = 2 if NQ == 4 else 1
        for kt in range(CK):
            at(kt, 0, "pv2", lambda: g("s_waitcnt lgkmcnt(0)"))
            if kt + 1 < CK or has_next:
                if kt + 1 == CK: at(kt, 0, "qkb", lambda: g(f"v_add_u32 v{vT}, s{sBase}, v{vT0}"))
                if NQ == 4:
                    for i, (jj, sl) in enumerate(((0, "l2"), (0, "l1"), (1, "l2"), (1, "l1"))):
                        at(kt, jj, sl, lambda kt=kt, i=i: vread1(kt + 1, i))
                else:
                    for i, sl in enumerate(("l2", "l2", "l1", "l1")):
                        at(kt, 0, sl, lambda kt=kt, i=i: vread1(kt + 1, i))
            if kt + 2 < CK or has_next:
                if kt + 2 == CK: at(kt, kj, "qkb", lambda: g(f"v_add_u32 v{vA}, s{sBase}, v{vL16}"))
                at(kt, kj, "l2", lambda kt=kt: kread1(kt + 2, 0))
                at(kt, kj, "l1", lambda kt=kt: kread1(kt + 2, 1))
        if has_next and NQ == 4:
            at(CK - 3, 3, "l2", lambda: g(f"ds_read_b32 v{vFl}, v{vL16}"))
            at(CK - 2, 1, "qka", lambda: g(f"s_add_u32 s{sNeed}, s{sNeed}, 4"))
            at(CK - 2, 1, "qkb", lambda: g(f"s_add_u32 s{sBase}, s{sBase}, {CH}"))
            at(CK - 2, 1, "qkb", lambda: g(f"v_readfirstlane_b32 s{sTmp}, v{vFl}"))
            at(CK - 2, 1, "pv2", lambda: g(f"s_and_b32 s{sBase}, s{sBase}, {RING-1}"))
            def chk():
                g(f"s_cmp_ge_u32 s{sTmp}, s{sNeed}")
                g(f"s_cbranch_scc0 L_slow_{name}")
                g.label(f"L_ok_{name}")
                slow.append(name)
            at(CK - 2, 1, "pv1", chk)
            at(CK - 1, 3, "l2", lambda: g(f"ds_add_u32 v{vSy}, v{IDX}"))
        if has_next and NQ == 2:
            for kt in range(CK):
                need = kt + 3 if kt < CK - 1 else 2 * CK
                if kt > 0: at(kt - 1, 1, "pv1", lambda: g(f"ds_read_b32 v{vFl}, v{vL16}"))
                def chk(kt=kt, need=need):
                    if INSTR == 3 and kt == CK - 1: g("s_memtime s[60:61]")
                    g(f"s_mov_b32 s{sNeed}, {need}")
                    g(f"v_readfirstlane_b32 s{sTmp}, v{vFl}")
                    if kt == CK - 2: g(f"s_mov_b32 s{sBase}, {CH}")
                    else: g("s_nop 0")
                    g(f"s_cmp_ge_u32 s{sTmp}, s{sNeed}")
                    if NP:
                        g(f"s_cbranch_scc1 L_ok_{name}{kt}")
                        g("s_call_b64 s[38:39], L_poll")
                        g.label(f"L_ok_{name}{kt}")
                    else:
                        g(f"s_cbranch_scc0 L_slow_{name}{kt}")
                        g.label(f"L_ok_{name}{kt}")
                        slow.append(f"{name}{kt}")
                at(kt, 0, "pv1", chk)
            at(CK - 1, 1, "pv1", lambda: g(f"ds_add_u32 v{vSy}, v{IDX}"))
        if extra:
            for k, fns in extra.items(): sched.setdefault(k, []).extend(fns)
        for n in range(NST):
            kt, jj = n // NQ, n % NQ
            j = order[jj]
            sb = S[n % 4]; sprev = S[(n - 1) % 4]; snext = S[(n + 1) % 4]
            if n == 0: prev = None if prev_j is None else (CK - 1, prev_j)
            else: prev = ((n - 1) // NQ, order[(n - 1) % NQ])
            if n == NST - 1: nxt = None if next_j is None else (CK, next_j)
            else: nxt = ((n + 1) // NQ, order[(n + 1) % NQ])
            e = iter(range(16))
            def ex(k):
                for _ in range(k):
                    i = next(e); g(f"v_exp_f32 v{sb+i}, v{sb+i}" if (ABL != 5 and not (AB & 4)) else "v_nop\n    v_nop")
            def slot(nm):
                for fn in sched.get((n, nm), []): fn()
            g.c(f"---- {name} step {n}: kt={kt} j={j}")
            if n == 0 and lead2:
                g(f"v_exp_f32 v{sprev+14}, v{sprev+14}")
                g(f"v_exp_f32 v{sprev+15}, v{sprev+15}")
            if hooks and (n, "top") in hooks: hooks[(n, "top")]()
            if nxt and (AB & 8): g("s_nop 1")
            elif nxt and ABL == 2: g(f"v_mfma_f32_32x32x16_bf16 {r(snext,16)}, {r(K[nxt[0]%2][0],4)}, {r(Q[nxt[1]][0],4)}, 0")
            elif nxt: g(f"v_mfma_f32_32x32x16_bf16 {r(snext,16)}, {r(K[nxt[0]%2][0],4)}, {r(Q[nxt[1]][0],4)}, {r(CB[nxt[1]//2],16)}")
            slot("qka")
            ex(3)
            if nxt and (AB & 8): g("s_nop 1")
            elif nxt: g(f"v_mfma_f32_32x32x16_bf16 {r(snext,16)}, {r(K[nxt[0]%2][1],4)}, {r(Q[nxt[1]][1],4)}, {r(snext,16)}")
            slot("qkb")
            ex(3)
            if prev: pv(prev[1], prev[0] % 2, 1, sprev)
            slot("pv2")
            ex(3)
            if prev: ls(prev[1], 1, sprev)
            slot("l2")
            ex(2)
            pv(j, kt % 2, 0, sb)
            slot("pv1")
            ex(3)
            ls(j, 0, sb)
            slot("l1")
            if not (skip_last2 and n == NST - 1): ex(2)
            if hooks and (n, "end") in hooks: hooks[(n, "end")]()
    def q23():
        g.c("Q tiles 2,3: scale, stand-in max from chunk 1 tile 0")
        if INSTR == 3: g("s_memtime s[62:63]")
        g("s_waitcnt vmcnt(0)")
        if INSTR == 3: g("s_memtime s[64:65]")
        qscale((2, 3))
        g("s_nop 1")
        sa, sb_ = S[(QP + 1) % 4], S[(QP + 2) % 4]
        kb = ((QP + 1) // 2) % 2
        qk(sa, kb, 2, "0"); qk(sb_, kb, 3, "0")
        g("s_nop 7")
        g("s_nop 1")
        pairmax(sa, sb_, 1)
        g("s_nop 1")
    region("head", (0, 1), None, 2, True, hooks={(QP, "top"): q23},
           extra={(2 * CK - 1, "pv1"): [lambda: g(f"s_mov_b32 s{sIt}, 1")]}, skip_last2=True)
    if INSTR == 2: g("s_memtime s[60:61]")
    g.L.append(".p2align 6")
    g.label("L_loop")
    inloop[0] = True
    for u in range(UNR):
        ex_ = None
        if u == UNR - 1:
            ex_ = {(4 * CK - 1, "pv1"): [lambda: g(f"s_add_u32 s{sIt}, s{sIt}, {UNR}"), lambda: g(f"s_cmp_lt_u32 s{sIt}, {NCH}")]}
        region(f"body{u}", (2, 3, 0, 1), 1, 2, True, extra=ex_, skip_last2=True, lead2=True)
    if INSTR == 2:
        g("s_cbranch_scc0 L_exit")
        g(f"s_cmp_eq_u32 s{sIt}, {1 + UNR}")
        g("s_cbranch_scc0 L_loop")
        g("s_memtime s[62:63]")
        g("s_branch L_loop")
        g.label("L_exit")
        g("s_memtime s[64:65]")
    else:
        g("s_cbranch_scc1 L_loop")
    def check_store(js, bit, P, X):
        final_store(js, P, None)
        a, b = js
        for x, j in enumerate(js):
            for i in range(0, 16, 2):
                t = X + (i // 2) % 4
                if x == 0 and i < 8: g(f"v_maximum3_f32 v{t}, abs(v{O[j]+i}), abs(v{O[j]+i+1}), abs(v{O[j]+i+1})")
                else: g(f"v_maximum3_f32 v{t}, abs(v{O[j]+i}), abs(v{O[j]+i+1}), v{t}")
        g(f"v_maximum3_f32 v{X}, v{X}, v{X+1}, v{X+2}")
        g(f"v_maximum3_f32 v{X+4}, v{Lr[a]}, v{Lr[b]}, v{Lr[b]}")
        g(f"v_minimum3_f32 v{X+5}, v{Lr[a]}, v{Lr[b]}, v{Lr[b]}")
        g(f"v_maximum3_f32 v{X}, v{X}, v{X+3}, v{X+3}")
        g(f"v_mov_b32 v{X+1}, 0x{(127 + HI) << 23:08x}")
        g(f"v_mov_b32 v{X+2}, 0x{(127 - LO) << 23:08x}")
        g(f"v_mov_b32 v{X+3}, 0x7f800000")
        g(f"v_cmp_nlt_f32 s[38:39], v{X+4}, v{X+1}")
        g(f"v_cmp_nlt_f32 vcc, v{X}, v{X+3}")
        g(f"v_cmp_nge_f32 s[42:43], v{X+5}, v{X+2}")
        g("s_nop 1")
        g("s_or_b64 vcc, vcc, s[38:39]")
        g("s_or_b64 vcc, vcc, s[42:43]")
        g("s_cmp_lg_u64 vcc, 0")
        g(f"s_cselect_b32 s{sTmp}, {bit}, 0")
        g(f"s_or_b32 s{sBad}, s{sBad}, s{sTmp}")
    def final_store(js, P, soff):
        a, b = js
        for x, j in enumerate(js):
            if SPL:
                g(f"v_mov_b32 v{Lr[j]+1}, v{Lr[j]}")
                g("s_nop 1")
                g(f"v_permlane32_swap_b32 v{Lr[j]}, v{Lr[j]+1}")
                g("s_nop 0")
                g(f"v_rcp_f32 v{T+2*x}, v{Lr[j]}")
                g(f"v_rcp_f32 v{T+2*x+1}, v{Lr[j]}")
            else:
                g(f"v_rcp_f32 v{T+2*x}, v{Lr[j]}")
                g(f"v_rcp_f32 v{T+2*x+1}, v{Lr[j]+1}")
            g("s_nop 0")
            for i in range(0, 16, 2): g(f"v_pk_mul_f32 {r(O[j]+i,2)}, {r(O[j]+i,2)}, {r(T+2*x,2)}")
            PP = P + 8 * x
            for gq in range(4):
                g(f"v_cvt_pk_bf16_f32 v{PP+2*gq}, v{O[j]+4*gq}, v{O[j]+4*gq+1}")
                g(f"v_cvt_pk_bf16_f32 v{PP+2*gq+1}, v{O[j]+4*gq+2}, v{O[j]+4*gq+3}")
            g("s_nop 1")
            for pr in range(2):
                bb = PP + 4 * pr
                g(f"v_permlane32_swap_b32 v{bb}, v{bb+2}")
                g(f"v_permlane32_swap_b32 v{bb+1}, v{bb+3}")
            g("s_nop 1")
            if FL:
                for i in range(4): g(f"v_permlane16_swap_b32 v{PP+i}, v{PP+4+i}")
                g("s_nop 0")
            for pr in range(2):
                va = vFl if FL else vQoff
                po = pr * 1024 if FL else pr * 32
                if soff is None:
                    off = j * 2048 + po
                    so = "0" if off < 4096 else f"s{sP}"
                    g(f"buffer_store_dwordx4 {r(PP+4*pr,4)}, v{va}, s[{sO}:{sO+3}], {so} offen offset:{off % 4096}{STF}")
                else:
                    g(f"buffer_store_dwordx4 {r(PP+4*pr,4)}, v{va}, s[{sO}:{sO+3}], s{soff} offen offset:{x*2048 + po}")
    def store_addr():
        g(f"v_and_b32 v{vFl}, 0xf0, v{vL16}")
        g(f"v_lshlrev_b32 v{vFl}, 2, v{vFl}")
        g(f"v_and_b32 v{T}, 0x100, v{vL16}")
        g(f"v_lshrrev_b32 v{T}, 3, v{T}")
        g(f"v_or_b32 v{vFl}, v{vFl}, v{T}")
        g(f"v_and_b32 v{T}, 0x200, v{vL16}")
        g(f"v_lshrrev_b32 v{T}, 5, v{T}")
        g(f"v_or_b32 v{vFl}, v{vFl}, v{T}")
    def first_pair():
        if FL: store_addr()
        check_store((0, 1), 1, Q[0][0], CB[0])
    region("tail", (2, 3), 1, None, False, hooks={(1, "end"): first_pair}, lead2=True)
    g("s_nop 1")
    pv(3, (CK - 1) % 2, 1, S[3]); ls(3, 1, S[3])
    if INSTR: g("s_memtime s[48:49]")
    check_store((2, 3), 2, Q[2][0], CB[0])
    g(f"s_cmp_lg_u32 s{sBad}, 0")
    if not ABL: g("s_cbranch_scc1 L_fallback")
    g.label("L_done")
    if INSTR:
        g("s_waitcnt vmcnt(0)")
        g("s_memtime s[50:51]")
        g("s_memrealtime s[54:55]")
        g("s_waitcnt lgkmcnt(0)")
        g("s_mov_b32 s68, s56")
        g("s_mov_b32 s69, s57")
        g("s_mov_b32 s70, 0x100000")
        g("s_mov_b32 s71, 0x00020000")
        g(f"s_lshl_b32 s{sTmp}, s2, 2")
        g(f"s_add_u32 s{sTmp}, s{sTmp}, s{sWave}")
        g(f"s_lshl_b32 s{sTmp}, s{sTmp}, 6")
        g("s_getreg_b32 s58, hwreg(HW_REG_XCC_ID)")
        g("s_getreg_b32 s59, hwreg(HW_REG_HW_ID)")
        for i, sr in enumerate((44, 46, 48, 50, 52, 54, 58, 59, 60, 60, 62, 64)):
            g(f"v_mov_b32 v{40+i}, s{sr}")
        g(f"v_mov_b32 v39, s{sTmp}")
        g("s_mov_b64 exec, 1")
        g("buffer_store_dwordx4 v[40:43], v39, s[68:71], 0 offen")
        g("buffer_store_dwordx4 v[44:47], v39, s[68:71], 0 offen offset:16")
        g("buffer_store_dwordx4 v[48:51], v39, s[68:71], 0 offen offset:32")
        g("s_waitcnt vmcnt(0)")
    g("s_endpgm")
    for name in slow:
        g.label(f"L_slow_{name}")
        g(f"s_sub_u32 s{sSpin}, s{sSpin}, 1")
        g("s_cbranch_scc1 L_end")
        g("s_sleep 1")
        g(f"ds_read_b32 v{vFl}, v{vL16}")
        g("s_waitcnt lgkmcnt(0)")
        g(f"v_readfirstlane_b32 s{sTmp}, v{vFl}")
        g("s_nop 0")
        g(f"s_cmp_ge_u32 s{sTmp}, s{sNeed}")
        g(f"s_cbranch_scc0 L_slow_{name}")
        g(f"s_branch L_ok_{name}")
    g.label("L_fallback")
    g("s_waitcnt vmcnt(0) lgkmcnt(0)")
    g(f"s_lshl_b32 s{sBase}, s{sWave}, 11")
    g(f"s_add_u32 s{sBase}, s{sBase}, {FBL}")
    g(f"s_sub_u32 s{sTmp}, s{sBase}, {KB + FO}")
    g(f"v_add_u32 v{vT}, s{sTmp}, v{vT0}")
    g(f"s_mov_b32 s{sP}, 0")
    g.label("L_fb_pair")
    g(f"s_and_b32 s{sTmp}, s{sBad}, 1")
    g("s_cbranch_scc0 L_fb_next")
    for j in range(2):
        for h in range(2):
            g(f"buffer_load_dwordx4 {r(Q[j][h], 4)}, v{vQoff}, s[{sQ}:{sQ+3}], s{sP} offen offset:{j*2048 + h*32}")
    g("s_waitcnt vmcnt(0)")
    qscale((0, 1))
    M0r, M1r = S[2], S[2] + 4
    g(f"v_mov_b32 v{M0r}, 0xff800000")
    g(f"v_mov_b32 v{M1r}, 0xff800000")
    g(f"s_mov_b32 s{sGoff}, 0")
    g.label("L_fb_max")
    g(f"buffer_load_dwordx4 {r(K[0][0],4)}, v{vQoff}, s[{sK}:{sK+3}], s{sGoff} offen")
    g(f"buffer_load_dwordx4 {r(K[0][1],4)}, v{vQoff}, s[{sK}:{sK+3}], s{sGoff} offen offset:32")
    g("s_waitcnt vmcnt(0)")
    qk(S[0], 0, 0, "0"); qk(S[1], 0, 1, "0")
    g("s_nop 15")
    for j, m in ((0, M0r), (1, M1r)):
        for i in range(0, 16, 2):
            g(f"v_max3_f32 v{m}, v{m}, v{S[j]+i}, v{S[j]+i+1}")
    g(f"s_add_u32 s{sGoff}, s{sGoff}, 2048")
    g(f"s_cmp_lt_u32 s{sGoff}, 131072")
    g("s_cbranch_scc1 L_fb_max")
    for j, m in ((0, M0r), (1, M1r)):
        finish_max(m, j)
        for i in range(16): g(f"v_mov_b32 v{O[j]+i}, 0")
        for i in range(4): g(f"v_mov_b32 v{Lr[j]+i}, 0")
    g(f"s_mov_b32 s{sGoff}, 0")
    g.label("L_fb_loop")
    g(f"buffer_load_dwordx4 {r(K[0][0],4)}, v{vQoff}, s[{sK}:{sK+3}], s{sGoff} offen")
    g(f"buffer_load_dwordx4 {r(K[0][1],4)}, v{vQoff}, s[{sK}:{sK+3}], s{sGoff} offen offset:32")
    g(f"s_mov_b32 m0, s{sBase}")
    g("s_nop 0")
    g(f"buffer_load_dwordx4 v{vL16}, s[{sV}:{sV+3}], s{sGoff} offen lds")
    g(f"buffer_load_dwordx4 v{vL16}, s[{sV}:{sV+3}], s{sGoff} offen offset:1024 lds")
    g("s_waitcnt vmcnt(0)")
    for i in range(4): vread1(0, i)
    qk(S[0], 0, 0, r(CB[0], 16)); qk(S[1], 0, 1, r(CB[1], 16))
    g("s_nop 15")
    for j in range(2):
        for i in range(16): g(f"v_exp_f32 v{S[j]+i}, v{S[j]+i}")
    g("s_waitcnt lgkmcnt(0)")
    g("s_nop 1")
    for j in range(2):
        pv(j, 0, 0, S[j]); pv(j, 0, 1, S[j]); ls(j, 0, S[j]); ls(j, 1, S[j])
    g(f"s_add_u32 s{sGoff}, s{sGoff}, 2048")
    g(f"s_cmp_lt_u32 s{sGoff}, 131072")
    g("s_cbranch_scc1 L_fb_loop")
    g("s_nop 15")
    g("s_nop 3")
    final_store((0, 1), S[2], sP)
    g("s_waitcnt vmcnt(0)")
    g.label("L_fb_next")
    g(f"s_lshr_b32 s{sBad}, s{sBad}, 1")
    g(f"s_add_u32 s{sP}, s{sP}, 4096")
    g(f"s_cmp_lt_u32 s{sP}, 8192")
    g("s_cbranch_scc1 L_fb_pair")
    g("s_branch L_done")
    g.label("L_end")
    g("s_endpgm")
    hdr = open("cdna_kernels/" + NAME + ".s.ref").read().split("; Override launch")[0]
    out = hdr + f"""; Override launch geometry by editing the next line (default: block=256,
; grid=ceil(out_elems/256), lds=0). Harness parses it; keep it on one line.
; @launch grid=(256,1,1) block=({384 if PM == 3 else 320},1,1) lds={LDS}
; -----------------------------------------------------------------------------------------------
; Fused attention forward, B*H=64 heads, S=2048, Dh=32, bf16.  One workgroup = 512 queries of one head.
;   waves 0-3 : compute, one per SIMD, four 32-query tiles each
;   wave  4   : loader, streams K/V key tiles into an 8-slot LDS ring with LDS-DMA
;   sync      : two LDS counters (READY = key tiles landed, PROG = chunks consumed); one s_barrier after their init
; Per 32x32 score tile:  S^T = K*Q^T - m + 48  (2 MFMA, Q pre-scaled by log2(e)/sqrt(Dh), 48-m enters through C; 2^48 cancels in O/l),
;   P = exp2(S^T) in place (16 v_exp_f32),  O^T += V^T*P^T and l += sum(P) by sparse MFMAs whose index selects the
;   high (bf16) half of every fp32 P register, so numerator and denominator use the same bf16 P.
; Softmax guard: m is the true max of one early key tile for each query pair.  After the pass every row is checked
;   (2^-40 <= l < 2^120 and finite outputs); a pair that fails is recomputed at L_fallback with the true row max over
;   all keys (two passes), so the result never depends on that stand-in being good.
; q-tiles 2,3 start one chunk later than tiles 0,1 and wrap around, which overlaps Q loads / O stores with compute.
; Generated by my own script (gen/gen11.py).
; -----------------------------------------------------------------------------------------------
.amdgcn_target "amdgcn-amd-amdhsa--gfx950"
.text
.globl {NAME}_kernel
.p2align 8
.type {NAME}_kernel,@function
{NAME}_kernel:
{g.text()}
.section .rodata,"a"
.p2align 6
.amdhsa_kernel {NAME}_kernel
  .amdhsa_next_free_vgpr 256
  .amdhsa_next_free_sgpr {80 if INSTR else 48}
  .amdhsa_accum_offset 256
  .amdhsa_group_segment_fixed_size 0
  .amdhsa_kernarg_size 48
  .amdhsa_user_sgpr_count 2
  .amdhsa_user_sgpr_kernarg_segment_ptr 1
  .amdhsa_system_sgpr_workgroup_id_x 1
.end_amdhsa_kernel
"""
    return out

if __name__ == "__main__":
    out = sys.argv[1] if len(sys.argv) > 1 else f"cdna_kernels/{NAME}.s"
    kw = dict(a.split("=") for a in sys.argv[2:])
    kw = {k: int(v) for k, v in kw.items()}
    open(out, "w").write(gen(**kw))
```
